```python
import torch

def _softmax(x, axis=-1):
    return torch.softmax(x, dim=axis)
def _gelu(x):
    return torch.nn.functional.gelu(x, approximate="tanh")
def _silu(x):
    return torch.nn.functional.silu(x)
def _sigmoid(x):
    return torch.sigmoid(x)
def _layernorm(x, axis=-1, eps=1e-5):
    m = x.mean(dim=axis, keepdim=True)
    v = x.var(dim=axis, keepdim=True, unbiased=False)
    return (x - m) / torch.sqrt(v + eps)
def _scatter_add(tgt, idx, src, axis=0):
    return tgt.clone().index_add_(axis, idx, src)
def _segment_sum(src, seg, n):
    out = torch.zeros((n,) + src.shape[1:], dtype=src.dtype)
    return out.index_add_(0, seg, src)
def _pad(x, pw):
    flat = tuple(v for pair in reversed(pw) for v in pair)
    return torch.nn.functional.pad(x, flat)

kernel_name = 'standalone__seq2seq_rnn_t_joint__speech'

def setup_inputs():

    _w = (lambda a: (lambda t: t.to(torch.bfloat16) if t.is_floating_point() else t)(torch.as_tensor(a)))
    B, T, D, K = 2, 4000, 144, 15
    U = 8
    sc = (1.0 / (K * D)) ** 0.5
    sd = (1.0 / D) ** 0.5
    return {
        "x": _w((lambda *s: torch.randn(*s, dtype=torch.bfloat16) * 0.2)(B, T, D) * 0.5),
        "w1": _w((lambda *s: torch.randn(*s, dtype=torch.bfloat16) * 3.2)(K, D, D) * sc),
        "w2": _w((lambda *s: torch.randn(*s, dtype=torch.bfloat16) * 3.2)(K, D, D) * sc),
        "g": _w((lambda *s: torch.randn(*s, dtype=torch.bfloat16) * 3.2)(B, U, D) * 0.5),
        "w_f": _w((lambda *s: torch.randn(*s, dtype=torch.bfloat16) * 3.2)(D, D) * sd),
        "w_g": _w((lambda *s: torch.randn(*s, dtype=torch.bfloat16) * 3.2)(D, D) * sd),
        "w_o": _w((lambda *s: torch.randn(*s, dtype=torch.bfloat16) * 3.2)(D, D) * sd),
    }

def reference(x, w1, w2, g, w_f, w_g, w_o):
    B, T, D = x.shape
    K = w1.shape[0]
    pad = K // 2
    xp = _pad(x, ((0,0),(pad,pad),(0,0)))
    h = torch.zeros_like(x)
    for i in range(K):
        h = h + torch.einsum("btc,cd->btd", xp[:, i:i+T, :], w1[i])
    h = _gelu(h)[:, ::2, :]
    T1 = h.shape[1]
    hp = _pad(h, ((0,0),(pad,pad),(0,0)))
    f = torch.zeros_like(h)
    for i in range(K):
        f = f + torch.einsum("btc,cd->btd", hp[:, i:i+T1, :], w2[i])
    f = _gelu(f)[:, ::2, :]
    fe = torch.einsum("btd,de->bte", f, w_f)
    ge = torch.einsum("bud,de->bue", g, w_g)
    j = torch.tanh(fe[:, :, None, :] + ge[:, None, :, :])
    return torch.einsum("btud,dv->btuv", j, w_o)
```

```python
class Asm:
    def __init__(self): self.l = []
    def __call__(self, s):
        for x in s.strip("\n").split("\n"): self.l.append("    " + x.strip() if not x.strip().endswith(":") else x.strip())
    def text(self): return "\n".join(self.l) + "\n"

def kdesc(name, vgpr, sgpr=102, accum=None):
    accum = accum or ((vgpr + 3) // 4 * 4)
    return f""".p2align 6
.amdhsa_kernel {name}
  .amdhsa_next_free_vgpr {vgpr}
  .amdhsa_next_free_sgpr {sgpr}
  .amdhsa_accum_offset {accum}
  .amdhsa_group_segment_fixed_size 0
  .amdhsa_kernarg_size 80
  .amdhsa_user_sgpr_count 2
  .amdhsa_user_sgpr_kernarg_segment_ptr 1
  .amdhsa_system_sgpr_workgroup_id_x 1
.end_amdhsa_kernel
"""
def khead(name):
    return f""".globl {name}
.p2align 8
.type {name},@function
{name}:
"""
```

```python
from gen_parts import *

def k1_prologue(a, fused=False):
    a(f"""
    s_cmp_ge_u32 s2, 252
    s_cbranch_scc1 L_k1_end
    s_load_dwordx4 s[4:7], s[0:1], 0
    s_load_dwordx2 s[24:25], s[0:1], 16
    s_load_dwordx2 s[26:27], s[0:1], 72
    v_lshrrev_b32 v1, 6, v0
    v_and_b32 v0, 63, v0
    v_readfirstlane_b32 s32, v1
    s_cmp_ge_u32 s2, 250
    s_cbranch_scc1 L_ge
    """)
    wgmap(a, "k1")
    a("s_mul_i32 s37, s30, 1152000\ns_waitcnt lgkmcnt(0)")
    srd(a, 8, 4, 1152000, add="s37")
    srd(a, 12, 6, 622080); srd(a, 16, 24, 622080); srd(a, 20, 26, 0x1000000)
    a("s_cmp_ge_u32 s32, 4\ns_cbranch_scc1 L_loader")

def slot_next(a, s):
    a(f"s_add_u32 s{s}, s{s}, {SLOT}\ns_cmp_ge_u32 s{s}, {RING + NSLOT*SLOT}\ns_cselect_b32 s{s}, {RING}, s{s}")

def k1_loader(a):
    a(f"""
    L_loader:
    s_sub_u32 s33, s32, 4
    s_lshl_b32 s34, s33, 6
    v_add_u32 v1, s34, v0
    s_mul_i32 s34, s31, 46080
    s_sub_u32 s34, s34, 6048
    s_mov_b32 s35, -38
    s_mov_b32 s36, -32
    s_movk_i32 s38, 1725
    s_lshl_b32 s39, s33, 10
    s_mov_b32 s40, 0
    v_mov_b32 v9, {BIG}
    L_xload:
    v_mul_u32_u24 v2, s38, v1
    v_lshrrev_b32 v2, 16, v2
    v_mad_i32_i24 v3, v2, s35, v1
    v_lshl_add_u32 v4, v1, 4, s34
    v_mad_i32_i24 v4, v2, s36, v4
    v_cmp_lt_u32 vcc, 35, v3
    v_cmp_gt_i32 s[42:43], 0, v4
    s_mov_b32 m0, s39
    v_add_u32 v1, 256, v1
    s_or_b64 vcc, vcc, s[42:43]
    s_add_u32 s39, s39, 4096
    v_cndmask_b32 v4, v4, v9, vcc
    s_add_u32 s40, s40, 1
    buffer_load_dwordx4 v4, s[8:11], 0 offen lds
    s_cmp_lt_u32 s40, 15
    s_cbranch_scc1 L_xload
    v_lshrrev_b32 v2, 2, v0
    v_mul_u32_u24 v2, 288, v2
    v_lshrrev_b32 v3, 4, v0
    v_and_b32 v3, 2, v3
    v_and_b32 v4, 3, v0
    v_xor_b32 v3, v3, v4
    v_lshl_add_u32 v2, v3, 4, v2
    s_lshl_b32 s41, s29, 6
    v_add_u32 v10, s41, v2
    s_cmp_eq_u32 s29, 4
    s_cselect_b32 s41, 1, 100
    v_cmp_lt_u32 vcc, s41, v3
    s_mul_i32 s44, s33, 4608
    s_lshl_b32 s45, s33, 10
    v_cndmask_b32 v10, v10, v9, vcc
    """)
    for e in range(5):
        a(f"""
        s_add_u32 s52, s33, {4*e}
        s_cmp_ge_u32 s52, 9
        s_cselect_b32 s53, 9, 0
        s_cselect_b32 s{46+e}, 41472, 0
        s_sub_u32 s52, s52, s53
        s_lshl_b32 s52, s52, 6
        v_add_u32 v1, s52, v0
        v_mul_u32_u24 v2, 3641, v1
        v_lshrrev_b32 v2, 16, v2
        v_mul_u32_u24 v3, 18, v2
        v_sub_u32 v3, v1, v3
        v_and_b32 v4, 4, v2
        v_lshlrev_b32 v4, 1, v4
        v_and_b32 v5, 8, v2
        v_lshrrev_b32 v5, 1, v5
        v_or_b32 v4, v4, v5
        v_and_b32 v5, 0x13, v2
        v_or_b32 v4, v4, v5
        s_cmp_eq_u32 s29, 4
        s_cselect_b32 s53, 15, 100
        v_cmp_lt_u32 vcc, s53, v4
        s_lshl_b32 s53, s29, 5
        v_add_u32 v4, s53, v4
        v_mul_u32_u24 v4, 288, v4
        v_lshl_add_u32 v4, v3, 4, v4
        v_cndmask_b32 v{11+e}, v4, v9, vcc
        """)
    a(f"s_mov_b32 s54, {RING}\ns_mov_b32 s55, s44\ns_mov_b32 s56, 0")
    def w1_chunk(tail=False):
        for m in range(2 if tail else 4):
            v = 10
            a(f"s_add_u32 s57, s54, s45\ns_add_u32 m0, s57, {4096*m}\ns_add_u32 s58, s55, {18432*m}")
            if tail and m == 1:
                a(f"s_cmp_eq_u32 s33, 3\ns_cselect_b32 s59, {BIG}, 0\nv_or_b32 v16, s59, v10")
                v = 16
            a(f"buffer_load_dwordx4 v{v}, s[12:15], s58 offen lds")
        a("s_add_u32 s55, s55, 73728"); slot_next(a, 54)
    def w2_chunk(tag, tail=False):
        n = 3 if tail else 5
        for e in range(n):
            if (not tail and e == 4): a(f"s_cmp_ge_u32 s33, 2\ns_cbranch_scc1 L_w2skip_{tag}")
            if (tail and e == 2): a(f"s_cmp_ge_u32 s33, 1\ns_cbranch_scc1 L_w2skip_{tag}")
            a(f"s_add_u32 s57, s54, s45\ns_add_u32 m0, s57, {4096*e}\ns_add_u32 s58, s56, s{46+e}")
            a(f"buffer_load_dwordx4 v{11+e}, s[16:19], s58 offen lds")
        a(f"L_w2skip_{tag}:\ns_add_u32 s56, s56, 82944"); slot_next(a, 54)
    cnt = [4]*8 + [2] + [4]*7 + [2]
    def issue(c, tag):
        if c < 8: w1_chunk()
        elif c == 8: w1_chunk(True)
        elif c < 16: w2_chunk(tag)
        elif c == 16: w2_chunk(tag, True)
    for c in range(4): issue(c, f"p{c}")
    def allowed(n):
        return sum(cnt[c] for c in range(n+1, min(n+4, 17)))
    a("s_mov_b32 s60, 0\nL_ld1:")
    a(f"s_waitcnt vmcnt({min(allowed(n) for n in range(0,4))})\ns_barrier")
    w1_chunk()
    a("s_add_u32 s60, s60, 1\ns_cmp_lt_u32 s60, 4\ns_cbranch_scc1 L_ld1")
    for n in range(4, 9):
        a(f"s_waitcnt vmcnt({allowed(n)})\ns_barrier")
        issue(n+4, f"q{n}")
    a("s_barrier\ns_barrier")
    a("s_mov_b32 s60, 0\nL_ld2:")
    a(f"s_waitcnt vmcnt({min(allowed(n) for n in range(9,12))})\ns_barrier")
    w2_chunk("l2")
    a("s_add_u32 s60, s60, 1\ns_cmp_lt_u32 s60, 3\ns_cbranch_scc1 L_ld2")
    for n in range(12, 17):
        a(f"s_waitcnt vmcnt({allowed(n)})\ns_barrier")
        if n + 4 <= 16: issue(n+4, f"r{n}")

def k1_compute(a, store_flags=""):
    ACC = 32; BUF = [64, 84]
    a(f"""
    s_and_b32 s33, s32, 1
    s_lshr_b32 s34, s32, 1
    v_and_b32 v1, 15, v0
    v_lshrrev_b32 v2, 4, v0
    ; vA0 = (8g + j/4)*64 + (g&1)*32 + 8*(j%4) + 2048*kh, xor 32*kh for own-tile-first order
    v_lshrrev_b32 v3, 2, v1
    v_lshl_add_u32 v3, v2, 3, v3
    v_lshlrev_b32 v3, 6, v3
    v_and_b32 v4, 1, v2
    v_lshl_add_u32 v3, v4, 5, v3
    v_and_b32 v4, 3, v1
    v_lshl_add_u32 v3, v4, 3, v3
    s_lshl_b32 s35, s33, 5
    v_xor_b32 v3, s35, v3
    s_lshl_b32 s35, s33, 11
    v_add_u32 v4, s35, v3
    v_xor_b32 v5, 32, v4
    s_mul_i32 s35, s34, 48
    v_add_u32 v6, s35, v1
    v_mul_u32_u24 v7, 608, v6
    v_lshl_add_u32 v7, v2, 4, v7
    s_mov_b32 s36, {RING}
    s_mov_b32 s37, s33
    s_mov_b32 s38, 0
    """)
    for i in range(24): a(f"v_mov_b32 v{ACC+i}, 0")
    def reads(m, buf):
        A = BUF[buf]; B = A + 8
        a(f"s_add_u32 s39, s37, {2*m}\ns_mul_i32 s40, s39, 57\ns_lshr_b32 s40, s40, 9\ns_lshl_b32 s40, s40, 5\ns_lshl_b32 s39, s39, 6\ns_add_u32 s39, s39, s40")
        a(f"v_add_u32 v10, s39, v7")
        for ct, va in ((0, 8), (1, 9)):
            for p in range(2): a(f"ds_read_b64_tr_b16 {vr(A+4*ct+2*p,2)}, v{va} offset:{4096*m+256*p}")
        for tt in range(3): a(f"ds_read_b128 {vr(B+4*tt)}, v10 offset:{9728*tt}")
    def mfmas(buf):
        A = BUF[buf]; B = A + 8
        for tt in range(3):
            for ct in range(2):
                c = ACC + 12*ct + 4*tt
                a(f"v_mfma_f32_16x16x32_bf16 {vr(c)}, {vr(A+4*ct)}, {vr(B+4*tt)}, {vr(c)}")
    def chunk(tail):
        a("s_barrier\nv_add_u32 v8, s36, v4\nv_add_u32 v9, s36, v5")
        reads(0, 0); reads(1, 1)
        a("s_waitcnt lgkmcnt(7)"); mfmas(0)
        if not tail:
            reads(2, 0); a("s_waitcnt lgkmcnt(7)"); mfmas(1)
            reads(3, 1); a("s_waitcnt lgkmcnt(7)"); mfmas(0)
        a("s_waitcnt lgkmcnt(0)"); mfmas(1)
        a("s_add_u32 s37, s37, 8"); slot_next(a, 36)
    a("L_c1:"); chunk(False)
    a("s_add_u32 s38, s38, 1\ns_cmp_lt_u32 s38, 8\ns_cbranch_scc1 L_c1")
    chunk(True)
    a(f"""
    s_barrier
    s_mul_i32 s39, s32, 3072
    v_lshlrev_b32 v11, 4, v0
    v_add_u32 v12, s39, v11
    s_xor_b32 s39, s32, 1
    s_mul_i32 s39, s39, 3072
    v_add_u32 v13, s39, v11
    s_nop 3
    """)
    for tt in range(3): a(f"ds_write_b128 v12, {vr(ACC+12+4*tt)} offset:{1024*tt}")
    a("s_waitcnt lgkmcnt(0)\ns_barrier")
    for tt in range(3): a(f"ds_read_b128 {vr(64+4*tt)}, v13 offset:{1024*tt}")
    a(f"""
    v_mul_u32_u24 v14, 80, v6
    v_lshl_add_u32 v14, v2, 3, v14
    s_lshl_b32 s39, s33, 5
    s_add_u32 s39, s39, {H_OFF}
    v_add_u32 v14, s39, v14
    s_mul_i32 s39, s31, 80
    s_sub_u32 s39, s39, 7
    v_add_u32 v15, s39, v6
    s_mov_b32 s40, {GC1}
    v_mov_b32 v16, {GC2}
    s_movk_i32 s41, 2000
    s_waitcnt lgkmcnt(0)
    """)
    for i in range(12): a(f"v_add_f32 v{ACC+i}, v{ACC+i}, v{64+i}")
    gelu(a, [ACC+i for i in range(12)], [64+i for i in range(12)], None, 40, 16)
    for tt in range(3):
        a(f"v_add_u32 v17, {16*tt}, v15\nv_cmp_gt_u32 vcc, s41, v17")
        a(f"v_cvt_pk_bf16_f32 v64, v{ACC+4*tt}, v{ACC+4*tt+1}\nv_cvt_pk_bf16_f32 v65, v{ACC+4*tt+2}, v{ACC+4*tt+3}")
        a(f"v_cndmask_b32 v{66+2*tt}, 0, v64, vcc\nv_cndmask_b32 v{67+2*tt}, 0, v65, vcc")
        a(f"ds_write_b64 v14, {vr(66+2*tt,2)} offset:{1280*tt}")
    ACC2 = 32
    a144_addr(a, 4, 0, 10, 11)
    a(f"""
    s_lshl_b32 s39, s32, 6
    v_add_u32 v5, 256, v4
    v_add_u32 v4, s39, v4
    v_mul_u32_u24 v6, 160, v1
    v_lshl_add_u32 v6, v2, 4, v6
    v_add_u32 v6, {H_OFF}, v6
    s_min_u32 s39, s32, 2
    s_mul_i32 s39, s39, 2560
    v_add_u32 v7, s39, v6
    s_mov_b32 s38, 0
    """)
    for i in range(28): a(f"v_mov_b32 v{ACC2+i}, 0")
    a("s_waitcnt lgkmcnt(0)")
    AB = [64, 92]
    def reads2(tap, buf):
        A = AB[buf]; B = A + 12; l = []
        for d in range(2):
            for p in range(2): l.append(f"ds_read_b64_tr_b16 {vr(A+4*d+2*p,2)}, v8 offset:{9216*tap+32*d+2304*p}")
        for tt in range(3): l.append(f"ds_read_b128 {vr(B+4*tt)}, v10 offset:{2560*tt+80*tap}")
        for p in range(2): l.append(f"ds_read_b64_tr_b16 {vr(A+8+2*p,2)}, v9 offset:{9216*tap+2304*p}")
        l.append(f"ds_read_b128 {vr(B+12)}, v11 offset:{80*tap}")
        return l
    def mf2(buf):
        A = AB[buf]; B = A + 12; l = []
        for tt in range(3):
            for d in range(2):
                c = ACC2 + 4*(3*d+tt); l.append(f"v_mfma_f32_16x16x32_bf16 {vr(c)}, {vr(A+4*d)}, {vr(B+4*tt)}, {vr(c)}")
        c = ACC2 + 24; l.append(f"v_mfma_f32_16x16x32_bf16 {vr(c)}, {vr(A+8)}, {vr(B+12)}, {vr(c)}")
        return l
    def chunk2(tail):
        a("s_barrier\nv_add_u32 v8, s36, v4\nv_add_u32 v9, s36, v5\nv_mov_b32 v10, v6\nv_mov_b32 v11, v7")
        r0 = reads2(0, 0)
        for x in r0: a(x)
        if tail:
            a("s_waitcnt lgkmcnt(0)")
            for x in mf2(0): a(x)
        else:
            r1 = reads2(1, 1)
            for x in r1[:5]: a(x)
            a("s_waitcnt lgkmcnt(5)")
            m0 = mf2(0); a(m0[0])
            for x in r1[5:]: a(x)
            for x in m0[1:]: a(x)
            a("s_waitcnt lgkmcnt(0)")
            for x in mf2(1): a(x)
            a("v_add_u32 v6, 160, v6\nv_add_u32 v7, 160, v7"); slot_next(a, 36)
    a("L_c2:"); chunk2(False)
    a("s_add_u32 s38, s38, 1\ns_cmp_lt_u32 s38, 7\ns_cbranch_scc1 L_c2")
    chunk2(True)
    a(f"""
    v_lshrrev_b32 v3, 3, v1
    v_mul_u32_u24 v3, 11520, v3
    v_lshl_add_u32 v3, v2, 6, v3
    v_and_b32 v4, 7, v1
    v_lshl_add_u32 v3, v4, 3, v3
    s_mul_i32 s39, s28, 57600
    s_mul_i32 s40, s29, 2304
    s_add_u32 s39, s39, s40
    s_add_u32 s39, s39, {P_WS}
    v_add_u32 v3, s39, v3
    s_lshl_b32 s40, s32, 9
    v_add_u32 v4, s40, v3
    v_mov_b32 v9, {BIG}
    v_cmp_gt_u32 vcc, 8, v1
    s_min_u32 s41, s32, 2
    s_mul_i32 s41, s41, 23040
    v_cndmask_b32 v5, v9, v4, vcc
    s_add_u32 s41, s41, 2048
    v_add_u32 v6, s41, v3
    v_cndmask_b32 v7, v9, v6, vcc
    s_cmp_eq_u32 s32, 2
    s_cselect_b64 vcc, -1, 0
    v_cndmask_b32 v6, v6, v7, vcc
    s_cmp_eq_u32 s32, 3
    s_cselect_b64 vcc, -1, 0
    v_cndmask_b32 v6, v6, v9, vcc
    s_movk_i32 s42, 23040
    s_mov_b32 s43, 46080
    """)
    for t in range(7):
        c = ACC2 + 4*t
        a(f"v_cvt_pk_bf16_f32 v{64+2*t}, v{c}, v{c+1}\nv_cvt_pk_bf16_f32 v{65+2*t}, v{c+2}, v{c+3}")
    for d in range(2):
        for tt in range(3):
            t = 3*d + tt
            va, so = [(4, "0"), (4, "s42"), (5, "s43")][tt]
            a(f"buffer_store_dwordx2 {vr(64+2*t,2)}, v{va}, s[20:23], {so} offen offset:{256*d}{store_flags}")
    a(f"buffer_store_dwordx2 {vr(76,2)}, v6, s[20:23], 0 offen{store_flags}")

def k1_ge(a, store_flags=""):
    a("L_ge:\ns_sub_u32 s30, s2, 250\ns_waitcnt lgkmcnt(0)\ns_load_dwordx2 s[4:5], s[0:1], 24\ns_load_dwordx2 s[6:7], s[0:1], 40\ns_mul_i32 s37, s30, 2304\ns_waitcnt lgkmcnt(0)")
    srd(a, 8, 4, 2304, add="s37"); srd(a, 12, 6, 41472); srd(a, 20, 26, 0x1000000)
    dma_w144(a, "wg", 12, WF_OFF, 8, 32, 0, [1, 2, 3, 4, 5])
    a(f"""
    v_lshlrev_b32 v1, 4, v0
    s_lshl_b32 s39, s32, 10
    v_add_u32 v1, s39, v1
    s_add_u32 m0, s39, {F_OFF}
    s_cmp_ge_u32 s32, 3
    s_cbranch_scc1 L_ge_skip
    buffer_load_dwordx4 v1, s[8:11], 0 offen lds
    L_ge_skip:
    s_waitcnt vmcnt(0)
    s_barrier
    """)
    a144_addr(a, 4, 0, 10, 11); a144_tail_addr(a, 5, 0, 10, 11)
    a(f"""
    v_and_b32 v1, 15, v0
    v_lshrrev_b32 v2, 4, v0
    v_mul_u32_u24 v6, 288, v1
    v_add_u32 v6, {F_OFF}, v6
    v_lshl_add_u32 v7, v2, 3, v6
    v_add_u32 v7, 256, v7
    v_lshl_add_u32 v6, v2, 4, v6
    s_lshl_b32 s39, s32, 5
    v_add_u32 v4, s39, v4
    v_add_u32 v5, s39, v5
    v_mul_u32_u24 v8, 576, v1
    v_lshl_add_u32 v8, v2, 4, v8
    s_mul_i32 s40, s30, 4608
    s_add_u32 s40, s40, {GE_WS}
    s_lshl_b32 s41, s32, 6
    s_add_u32 s40, s40, s41
    v_add_u32 v8, s40, v8
    v_mov_b32 v9, {BIG}
    v_cmp_gt_u32 vcc, 8, v1
    s_mov_b32 s44, {TS}
    """)
    a("v_cndmask_b32 v8, v9, v8, vcc")
    load_rows_B(a, 64, 6, 7)
    for rep in range(2):
        if rep == 1: a("s_cmp_lg_u32 s32, 0\ns_cbranch_scc1 L_ge_done")
        proj_tile(a, 32, 84, 64, 4, 5, WF_OFF + 256*rep)
        a("s_nop 7")
        for i in range(4): a(f"v_mul_f32 v{36+i}, s44, v{32+i}")
        a(f"buffer_store_dwordx4 {vr(36)}, v8, s[20:23], 0 offen offset:{512*rep}{store_flags}\ns_nop 1")
    a("L_ge_done:")
```

```python
from gen_parts import *

def k2_prologue(a):
    a(f"""
    s_cmp_ge_u32 s2, 250
    s_cbranch_scc1 L_k2_end
    s_load_dwordx2 s[4:5], s[0:1], 32
    s_load_dwordx4 s[24:27], s[0:1], 48
    s_load_dwordx2 s[6:7], s[0:1], 72
    v_lshrrev_b32 v1, 6, v0
    v_and_b32 v0, 63, v0
    v_readfirstlane_b32 s32, v1
    """)
    wgmap(a, "k2")
    a("s_waitcnt lgkmcnt(0)")
    srd(a, 8, 4, 41472); srd(a, 12, 24, 41472); srd(a, 16, 26, 4608000); srd(a, 20, 6, 0x1000000)

def k2_ge_loads(a, sc=""):
    a(f"""
    v_and_b32 v3, 7, v0
    v_mul_u32_u24 v3, 576, v3
    v_lshrrev_b32 v4, 4, v0
    s_mul_i32 s39, s30, 4608
    s_add_u32 s39, s39, {GE_WS}
    v_add_u32 v3, s39, v3
    v_lshl_add_u32 v5, v4, 4, v3
    v_lshl_add_u32 v3, v4, 5, v3
    """)
    for c in range(4):
        for h in range(2): a(f"buffer_load_dwordx4 {vr(16+8*c+4*h)}, v3, s[20:23], 0 offen offset:{128*c+16*h}{sc}")
    a(f"buffer_load_dwordx4 {vr(48)}, v5, s[20:23], 0 offen offset:512{sc}")

def k2_partial_loads(a, sc=""):
    a(f"""
    s_lshl_b32 s39, s32, 6
    v_add_u32 v6, s39, v0
    s_mul_i32 s40, s28, 5
    s_add_u32 s40, s40, s29
    s_mul_i32 s40, s40, 11520
    s_add_u32 s40, s40, {P_WS}
    v_lshl_add_u32 v7, v6, 3, s40
    v_mov_b32 v9, {BIG}
    s_movk_i32 s41, 288
    v_cmp_gt_u32 vcc, s41, v6
    s_movk_i32 s42, 4608
    s_movk_i32 s43, 9216
    v_cndmask_b32 v7, v9, v7, vcc
    """)
    for s_, (so, off) in enumerate([("0", 0), ("0", 2304), ("s42", 0), ("s42", 2304), ("s43", 0)]):
        a(f"buffer_load_dwordx2 {vr(52+2*s_,2)}, v7, s[20:23], {so} offen offset:{off}{sc}")

def k2_partial_sum(a):
    X = [64, 65, 66, 67]; T = [68, 69, 70, 71]
    a(f"""
    v_lshrrev_b32 v10, 5, v6
    v_lshlrev_b32 v10, 5, v10
    v_bfe_u32 v11, v6, 3, 2
    v_lshl_add_u32 v10, v11, 3, v10
    v_and_b32 v11, 7, v6
    v_mul_u32_u24 v11, 288, v11
    v_add_u32 v10, v10, v11
    v_add_u32 v10, {F_OFF}, v10
    v_mov_b32 v11, {F_OFF + 15*288}
    v_cndmask_b32 v10, v11, v10, vcc
    s_mov_b32 s40, {GC1}
    v_mov_b32 v12, {GC2}
    v_mov_b32 v13, 0xffff0000
    """)
    return X, T

def k2_partial_math(a, X, T):
    for s_ in range(5):
        r = 52 + 2*s_
        d = X if s_ == 0 else T
        a(f"v_lshlrev_b32 v{d[0]}, 16, v{r}\nv_and_b32 v{d[1]}, v13, v{r}\nv_lshlrev_b32 v{d[2]}, 16, v{r+1}\nv_and_b32 v{d[3]}, v13, v{r+1}")
        if s_ > 0:
            a(f"v_pk_add_f32 {vr(X[0],2)}, {vr(X[0],2)}, {vr(T[0],2)}\nv_pk_add_f32 {vr(X[2],2)}, {vr(X[2],2)}, {vr(T[2],2)}")
    gelu(a, X, T, None, 40, 12)
    a(f"v_cvt_pk_bf16_f32 v72, v{X[0]}, v{X[1]}\nv_cvt_pk_bf16_f32 v73, v{X[2]}, v{X[3]}\nds_write_b64 v10, v[72:73]")

def k2_fe(a):
    a144_addr(a, 4, 0, 10, 11); a144_tail_addr(a, 5, 0, 10, 11)
    a(f"""
    v_and_b32 v1, 15, v0
    v_lshrrev_b32 v2, 4, v0
    v_mul_u32_u24 v6, 288, v1
    v_add_u32 v6, {F_OFF}, v6
    v_lshl_add_u32 v7, v2, 3, v6
    v_add_u32 v7, 256, v7
    v_lshl_add_u32 v6, v2, 4, v6
    s_lshl_b32 s39, s32, 5
    v_add_u32 v14, s39, v4
    v_add_u32 v15, s39, v5
    v_mul_u32_u24 v8, 576, v1
    v_lshl_add_u32 v8, v2, 4, v8
    s_lshl_b32 s41, s32, 6
    s_add_u32 s41, s41, {FE_OFF}
    v_add_u32 v8, s41, v8
    s_mov_b32 s44, {TS}
    """)

def k2_fe_run(a):
    load_rows_B(a, 64, 6, 7)
    for rep in range(2):
        if rep == 1: a("s_cmp_lg_u32 s32, 7\ns_cbranch_scc1 L_fe_done")
        proj_tile(a, 84, 92, 64, 14, 15, WF_OFF + 32*rep)
        a("s_nop 7")
        for i in range(4): a(f"v_mul_f32 v{88+i}, s44, v{84+i}")
        a(f"ds_write_b128 v8, {vr(88)} offset:{64*rep}")
    a("L_fe_done:")

def interleave(main, extra, every):
    out = []; e = list(extra)
    for i, x in enumerate(main):
        out.append(x)
        if e and (i + 1) % every == 0: out.append(e.pop(0))
    return out + e

def k2_joint(a, st=""):
    GE, ACC, AB, FE = 16, 52, [88, 124], 160
    BB = [196, 200]
    a(f"""
    v_lshrrev_b32 v6, 3, v1
    s_lshl_b32 s39, s32, 1
    v_add_u32 v6, s39, v6
    v_mul_u32_u24 v6, 576, v6
    v_add_u32 v6, {FE_OFF}, v6
    v_lshl_add_u32 v7, v2, 4, v6
    v_lshl_add_u32 v6, v2, 5, v6
    v_add_u32 v4, {WO_OFF}, v4
    v_add_u32 v5, {WO_OFF}, v5
    """)
    for c in range(4):
        for h in range(2): a(f"ds_read_b128 {vr(FE+8*c+4*h)}, v6 offset:{128*c+16*h}")
    a(f"ds_read_b128 {vr(FE+32)}, v7 offset:512")
    def areads(c):
        A = AB[c % 2]; l = []
        for vt in range(9):
            if c < 4:
                for p in range(2): l.append(f"ds_read_b64_tr_b16 {vr(A+4*vt+2*p,2)}, v4 offset:{32*vt + c*32*288 + p*2304}")
            else:
                l.append(f"ds_read_b64_tr_b16 {vr(A+4*vt,2)}, v5 offset:{32*vt}")
        return l
    def mf(c):
        A = AB[c % 2]; B = BB[c % 2]; l = []
        for vt in range(9):
            src = "0" if c == 0 else vr(ACC+4*vt)
            if c < 4: l.append(f"v_mfma_f32_16x16x32_bf16 {vr(ACC+4*vt)}, {vr(A+4*vt)}, {vr(B)}, {src}")
            else: l.append(f"v_mfma_f32_16x16x16_bf16 {vr(ACC+4*vt)}, {vr(A+4*vt,2)}, {vr(B,2)}, {src}")
        return l
    def tanh(c):
        n = 8 if c < 4 else 4
        x = [GE + 8*c + i for i in range(n)]; B = BB[c % 2]; l = []
        for i in range(n): l.append(f"v_exp_f32 v{x[i]}, v{x[i]}")
        for i in range(0, n, 2): l.append(f"v_pk_add_f32 {vr(x[i],2)}, {vr(x[i],2)}, 1.0 op_sel_hi:[1,0]")
        for i in range(n): l.append(f"v_rcp_f32 v{x[i]}, v{x[i]}")
        for i in range(0, n, 2): l.append(f"v_pk_fma_f32 {vr(x[i],2)}, {vr(x[i],2)}, s[46:47], 1.0 op_sel_hi:[1,1,0]")
        for i in range(0, n, 2): l.append(f"v_cvt_pk_bf16_f32 v{B+i//2}, v{x[i]}, v{x[i+1]}")
        return l
    a(f"""
    s_mov_b32 s46, 0xc0000000
    s_mov_b32 s47, 0xc0000000
    s_mul_i32 s39, s30, 1000
    s_mul_i32 s40, s31, 40
    s_add_u32 s39, s39, s40
    s_lshl_b32 s40, s29, 3
    s_add_u32 s39, s39, s40
    s_lshl_b32 s40, s32, 1
    s_add_u32 s39, s39, s40
    s_mul_i32 s39, s39, 2304
    v_mul_u32_u24 v8, 288, v1
    v_add_u32 v8, s39, v8
    v_lshl_add_u32 v9, v2, 3, v8
    v_and_b32 v10, 1, v2
    v_lshl_add_u32 v8, v10, 5, v8
    v_lshrrev_b32 v10, 1, v2
    v_lshl_add_u32 v8, v10, 4, v8
    s_waitcnt vmcnt(0) lgkmcnt(0)
    """)
    for i in range(0, 36, 2): a(f"v_pk_add_f32 {vr(GE+i,2)}, {vr(GE+i,2)}, {vr(FE+i,2)}")
    for x in areads(0)[:15]: a(x)
    t = tanh(0)
    for x in interleave(t[:8], areads(0)[15:], 2): a(x)
    for x in t[8:]: a(x)
    for c in range(1, 5):
        a("s_waitcnt lgkmcnt(0)")
        r = areads(c)
        for x in r[:15]: a(x)
        t = tanh(c); m = mf(c-1)
        head = interleave(t[:8] if c < 4 else t[:4], r[15:], 2)
        k = 8 if c < 4 else 4
        for x in interleave(head + t[k:], m, 3 if c < 4 else 1): a(x)
    a("s_waitcnt lgkmcnt(0)\ns_nop 1")
    for x in mf(4): a(x)
    a("s_nop 1")
    for p in range(4):
        R = 160 + 4*p
        for h in range(2):
            c = ACC + 4*(2*p+h)
            a(f"v_cvt_pk_bf16_f32 v{R+2*h}, v{c}, v{c+1}\nv_cvt_pk_bf16_f32 v{R+2*h+1}, v{c+2}, v{c+3}")
        a(f"s_nop 1\nv_permlane16_swap_b32 v{R}, v{R+2}\nv_permlane16_swap_b32 v{R+1}, v{R+3}")
        a(f"s_nop 1\nbuffer_store_dwordx4 {vr(R)}, v8, s[16:19], 0 offen offset:{64*p}{st}")
    c = ACC + 32
    a(f"v_cvt_pk_bf16_f32 v176, v{c}, v{c+1}\nv_cvt_pk_bf16_f32 v177, v{c+2}, v{c+3}")
    a(f"buffer_store_dwordx2 v[176:177], v9, s[16:19], 0 offen offset:256{st}")

def k2_standalone(a):
    k2_prologue(a)
    a("s_cmp_ge_u32 s32, 5\ns_cbranch_scc1 L_k2_nopart")
    k2_partial_loads(a)
    a("L_k2_nopart:\ns_cmp_ge_u32 s32, 4\ns_cbranch_scc1 L_k2_noge")
    k2_ge_loads(a)
    a("L_k2_noge:")
    dma_w144(a, "wf", 8, WF_OFF, 8, 32, 0, [1, 2, 3, 4, 5])
    dma_w144(a, "wo", 12, WO_OFF, 8, 32, 0, [1, 2, 3, 4, 5])
    a("s_cmp_ge_u32 s32, 5\ns_cbranch_scc1 L_k2_nosum")
    a("s_lshl_b32 s39, s32, 6\nv_add_u32 v6, s39, v0\ns_movk_i32 s41, 288\nv_cmp_gt_u32 vcc, s41, v6\ns_nop 1")
    X, T = k2_partial_sum(a)
    a("s_waitcnt vmcnt(10)")
    k2_partial_math(a, X, T)
    a("L_k2_nosum:")
    k2_fe(a)
    a("s_waitcnt vmcnt(5) lgkmcnt(0)\ns_barrier")
    k2_fe_run(a)
    a("s_waitcnt vmcnt(0) lgkmcnt(0)\ns_barrier\ns_cmp_ge_u32 s32, 4\ns_cbranch_scc1 L_k2_end")
    k2_joint(a)
    a("L_k2_end:\ns_endpgm")
```

```python
from asmlib import *
X_OFF, RING, SLOT, NSLOT, H_OFF = 0, 61440, 18432, 5, 153600
LDS1 = 162560
WF_OFF, WO_OFF, F_OFF, FE_OFF = 0, 98304, 41984, 46592
LDS2 = 140288
P_WS, GE_WS = 0, 3145728
BIG = 0x80000000
LOG2E = 1.4426950408889634
import struct
def f2u(x): return struct.unpack("<I", struct.pack("<f", x))[0]
GC1 = f2u(-2 * 0.7978845608028654 * LOG2E); GC2 = f2u(-2 * 0.7978845608028654 * LOG2E * 0.044715)
TS = f2u(2 * LOG2E)

def vr(b, n=4): return f"v[{b}:{b+n-1}]"

def srd(a, d, p, nbytes, add=None):
    if add is None:
        a(f"s_mov_b32 s{d}, s{p}\ns_and_b32 s{d+1}, s{p+1}, 0xffff")
    else:
        a(f"s_add_u32 s{d}, s{p}, {add}\ns_addc_u32 s{d+1}, s{p+1}, 0\ns_and_b32 s{d+1}, s{d+1}, 0xffff")
    a(f"s_mov_b32 s{d+2}, {nbytes}\ns_mov_b32 s{d+3}, 0x20000")

def wgmap(a, tag):
    a(f"""
    s_and_b32 s33, s2, 7
    s_lshr_b32 s34, s2, 3
    s_mul_i32 s35, s34, 52
    s_lshr_b32 s35, s35, 8
    s_mul_i32 s36, s35, 5
    s_sub_u32 s29, s34, s36
    s_mul_i32 s28, s33, 6
    s_add_u32 s28, s28, s35
    s_cmp_lt_u32 s2, 240
    s_cbranch_scc1 L_map_{tag}
    s_sub_u32 s33, s2, 240
    s_cmp_ge_u32 s33, 5
    s_cselect_b32 s35, 1, 0
    s_add_u32 s28, s35, 48
    s_mul_i32 s35, s35, 5
    s_sub_u32 s29, s33, s35
    L_map_{tag}:
    s_cmp_ge_u32 s28, 25
    s_cselect_b32 s30, 1, 0
    s_mul_i32 s33, s30, 25
    s_sub_u32 s31, s28, s33
    """)

def gelu(a, x, t0, t1, sc1, sc2):
    for r, u in zip(x, t0): a(f"v_mul_f32 v{u}, v{r}, v{r}")
    for r, u in zip(x, t0): a(f"v_fma_f32 v{u}, v{u}, v{sc2}, s{sc1}")
    for r, u in zip(x, t0): a(f"v_mul_f32 v{u}, v{u}, v{r}")
    for u in t0: a(f"v_exp_f32 v{u}, v{u}")
    if len(x) < 2: a("s_nop 0")
    for u in t0: a(f"v_add_f32 v{u}, 1.0, v{u}")
    for u in t0: a(f"v_rcp_f32 v{u}, v{u}")
    if len(x) < 2: a("s_nop 0")
    for r, u in zip(x, t0): a(f"v_mul_f32 v{r}, v{r}, v{u}")

def dma_w144(a, tag, srdreg, ldsbase, nw, swave, vlane, vt):
    j, rho, u, k = vt[:4]
    a(f"""
    s_lshl_b32 s40, s{swave}, 6
    v_add_u32 v{j}, s40, v{vlane}
    s_lshl_b32 s41, s{swave}, 10
    s_add_u32 s41, s41, {ldsbase}
    s_mov_b32 s42, 0
    s_movk_i32 s43, 3641
    s_cmp_eq_u32 s{swave}, 0
    s_cselect_b32 s44, {40//nw+1}, {40//nw}
    L_w144_{tag}:
    v_mul_u32_u24 v{rho}, s43, v{j}
    v_lshrrev_b32 v{rho}, 16, v{rho}
    v_mul_u32_u24 v{u}, 18, v{rho}
    v_sub_u32 v{u}, v{j}, v{u}
    v_and_b32 v{k}, 4, v{rho}
    v_lshlrev_b32 v{k}, 1, v{k}
    v_and_b32 v{vt[4]}, 8, v{rho}
    v_lshrrev_b32 v{vt[4]}, 1, v{vt[4]}
    v_or_b32 v{k}, v{k}, v{vt[4]}
    v_and_b32 v{vt[4]}, 0xf3, v{rho}
    v_or_b32 v{k}, v{k}, v{vt[4]}
    v_cmp_gt_u32 vcc, 128, v{rho}
    s_mov_b32 m0, s41
    v_add_u32 v{j}, {64*nw}, v{j}
    v_cndmask_b32 v{k}, v{rho}, v{k}, vcc
    v_mul_u32_u24 v{k}, 288, v{k}
    v_lshl_add_u32 v{k}, v{u}, 4, v{k}
    buffer_load_dwordx4 v{k}, s[{srdreg}:{srdreg+3}], 0 offen lds
    s_add_u32 s41, s41, {1024*nw}
    s_add_u32 s42, s42, 1
    s_cmp_lt_u32 s42, s44
    s_cbranch_scc1 L_w144_{tag}
    """)

def a144_addr(a, vdst, vlane, t0, t1):
    a(f"""
    v_lshrrev_b32 v{t0}, 5, v{vlane}
    v_lshlrev_b32 v{t0}, 4, v{t0}
    v_bfe_u32 v{t1}, v{vlane}, 4, 1
    v_lshl_add_u32 v{t0}, v{t1}, 2, v{t0}
    v_bfe_u32 v{t1}, v{vlane}, 2, 2
    v_add_u32 v{t0}, v{t0}, v{t1}
    v_mul_u32_u24 v{t0}, 288, v{t0}
    v_and_b32 v{t1}, 3, v{vlane}
    v_lshl_add_u32 v{vdst}, v{t1}, 3, v{t0}
    """)

def a144_tail_addr(a, vdst, vlane, t0, t1):
    a(f"""
    v_lshrrev_b32 v{t0}, 2, v{vlane}
    v_add_u32 v{t0}, 128, v{t0}
    v_mul_u32_u24 v{t0}, 288, v{t0}
    v_and_b32 v{t1}, 3, v{vlane}
    v_lshl_add_u32 v{vdst}, v{t1}, 3, v{t0}
    """)

def proj_tile(a, acc, A, B, vA, vAt, aoff):
    for c in range(4):
        for p in range(2):
            a(f"ds_read_b64_tr_b16 {vr(A+4*c+2*p,2)}, v{vA} offset:{aoff + c*32*288 + p*2304}")
    a(f"ds_read_b64_tr_b16 {vr(A+16,2)}, v{vAt} offset:{aoff}")
    for c in range(4):
        a(f"s_waitcnt lgkmcnt({7-2*c})")
        src = "0" if c == 0 else vr(acc)
        a(f"v_mfma_f32_16x16x32_bf16 {vr(acc)}, {vr(A+4*c)}, {vr(B+4*c)}, {src}")
    a("s_waitcnt lgkmcnt(0)\ns_nop 7")
    a(f"v_mfma_f32_16x16x16_bf16 {vr(acc)}, {vr(A+16,2)}, {vr(B+16,2)}, {vr(acc)}")

def load_rows_B(a, B, vB, vBt):
    for c in range(4): a(f"ds_read_b128 {vr(B+4*c)}, v{vB} offset:{64*c}")
    a(f"ds_read_b64 {vr(B+16,2)}, v{vBt}")
```

```python
import sys
from gen_k1 import *
from gen_k2 import *
NAME = "standalone__seq2seq_rnn_t_joint__speech_kernel"
def two_kernel():
    hdr = f"""; @launch kernel={NAME} grid=(252,1,1) block=(512,1,1) lds={LDS1}
; @launch kernel=joint_kernel grid=(250,1,1) block=(512,1,1) lds={LDS2}
.amdgcn_target "amdgcn-amd-amdhsa--gfx950"
.text
"""
    a = Asm()
    k1_prologue(a); k1_compute(a); a("s_endpgm"); k1_loader(a); a("s_endpgm"); k1_ge(a); a("L_k1_end:\ns_endpgm")
    b = Asm(); k2_standalone(b)
    return hdr + khead(NAME) + a.text() + khead("joint_kernel") + b.text() + '.section .rodata,"a"\n' + kdesc(NAME, 128) + kdesc("joint_kernel", 208)
if __name__ == "__main__":
    out = sys.argv[1]
    open(out, "w").write(two_kernel())
```

```python
from gen_parts import *
SPIN = 400000
import gen_parts as gp

def k1_prologue(a, fused=False):
    a(f"""
    s_cmp_ge_u32 s2, 252
    s_cbranch_scc1 L_k1_end
    s_load_dwordx4 s[4:7], s[0:1], 0
    s_load_dwordx2 s[24:25], s[0:1], 16
    s_load_dwordx2 s[26:27], s[0:1], 72
    v_lshrrev_b32 v1, 6, v0
    v_and_b32 v0, 63, v0
    v_readfirstlane_b32 s32, v1
    """)
    if fused: a("s_load_dwordx2 s[44:45], s[0:1], 32\ns_load_dwordx4 s[48:51], s[0:1], 48\ns_load_dwordx2 s[46:47], s[0:1], 64")
    a("s_cmp_ge_u32 s2, 250\ns_cbranch_scc1 L_ge")
    wgmap(a, "k1")
    a("s_mul_i32 s37, s30, 1152000\ns_waitcnt lgkmcnt(0)")
    srd(a, 8, 4, 1152000, add="s37")
    srd(a, 12, 6, 622080); srd(a, 16, 24, 622080); srd(a, 20, 26, 0x1000000)
    if fused: fused_srds(a)
    a("s_cmp_ge_u32 s32, 4\ns_cbranch_scc1 L_loader")

def fused_srds(a):
    srd(a, 64, 44, 41472); srd(a, 68, 48, 41472); srd(a, 72, 50, 4608000); srd(a, 76, 46, 256)

def signal(a, idx_expr, tag):
    a(f"""
    s_waitcnt vmcnt(0)
    v_mov_b32 v1, {BIG}
    v_mov_b32 v2, {idx_expr}
    v_lshlrev_b32 v2, 2, v2
    v_cmp_eq_u32 vcc, 0, v0
    v_mov_b32 v3, 1
    s_nop 0
    v_cndmask_b32 v1, v1, v2, vcc
    buffer_atomic_add v3, v1, s[76:79], 0 offen sc1
    """)

def slot_next(a, s):
    a(f"s_add_u32 s{s}, s{s}, {SLOT}\ns_cmp_ge_u32 s{s}, {RING + NSLOT*SLOT}\ns_cselect_b32 s{s}, {RING}, s{s}")

def x_load(a):
    a(f"""
    s_lshl_b32 s34, s33, 6
    v_add_u32 v1, s34, v0
    s_mul_i32 s34, s31, 46080
    s_sub_u32 s34, s34, 6048
    s_mov_b32 s35, -38
    s_mov_b32 s36, -32
    s_movk_i32 s38, 1725
    s_lshl_b32 s39, s33, 10
    s_mov_b32 s40, 0
    v_mov_b32 v9, {BIG}
    L_xload:
    v_mul_u32_u24 v2, s38, v1
    v_lshrrev_b32 v2, 16, v2
    v_mad_i32_i24 v3, v2, s35, v1
    v_lshl_add_u32 v4, v1, 4, s34
    v_mad_i32_i24 v4, v2, s36, v4
    v_cmp_lt_u32 vcc, 35, v3
    v_cmp_gt_i32 s[42:43], 0, v4
    s_mov_b32 m0, s39
    v_add_u32 v1, 256, v1
    s_or_b64 vcc, vcc, s[42:43]
    s_add_u32 s39, s39, 4096
    v_cndmask_b32 v4, v4, v9, vcc
    s_add_u32 s40, s40, 1
    buffer_load_dwordx4 v4, s[8:11], 0 offen lds
    s_cmp_lt_u32 s40, 15
    s_cbranch_scc1 L_xload
    """)

def k1_loader(a, fused=False):
    a(f"""
    L_loader:
    s_sub_u32 s33, s32, 4
    v_mov_b32 v9, {BIG}
    v_lshrrev_b32 v2, 2, v0
    v_mul_u32_u24 v2, 288, v2
    v_lshrrev_b32 v3, 4, v0
    v_and_b32 v3, 2, v3
    v_and_b32 v4, 3, v0
    v_xor_b32 v3, v3, v4
    v_lshl_add_u32 v2, v3, 4, v2
    s_lshl_b32 s41, s29, 6
    v_add_u32 v10, s41, v2
    s_cmp_eq_u32 s29, 4
    s_cselect_b32 s41, 1, 100
    v_cmp_lt_u32 vcc, s41, v3
    s_mul_i32 s44, s33, 4608
    s_lshl_b32 s45, s33, 10
    v_cndmask_b32 v10, v10, v9, vcc
    """)
    for e in range(5):
        a(f"""
        s_add_u32 s52, s33, {4*e}
        s_cmp_ge_u32 s52, 9
        s_cselect_b32 s53, 9, 0
        s_cselect_b32 s{46+e}, 41472, 0
        s_sub_u32 s52, s52, s53
        s_lshl_b32 s52, s52, 6
        v_add_u32 v1, s52, v0
        v_mul_u32_u24 v2, 3641, v1
        v_lshrrev_b32 v2, 16, v2
        v_mul_u32_u24 v3, 18, v2
        v_sub_u32 v3, v1, v3
        v_and_b32 v4, 4, v2
        v_lshlrev_b32 v4, 1, v4
        v_and_b32 v5, 8, v2
        v_lshrrev_b32 v5, 1, v5
        v_or_b32 v4, v4, v5
        v_and_b32 v5, 0x13, v2
        v_or_b32 v4, v4, v5
        v_mul_u32_u24 v{21+e}, 288, v4
        v_lshl_add_u32 v{21+e}, v3, 4, v{21+e}
        s_cmp_eq_u32 s29, 4
        s_cselect_b32 s53, 15, 100
        v_cmp_lt_u32 vcc, s53, v4
        s_lshl_b32 s53, s29, 5
        v_add_u32 v4, s53, v4
        v_mul_u32_u24 v4, 288, v4
        v_lshl_add_u32 v4, v3, 4, v4
        v_cndmask_b32 v{11+e}, v4, v9, vcc
        """)
    a(f"s_mov_b32 s54, {RING}\ns_mov_b32 s55, s44\ns_mov_b32 s56, 0")
    def w1_chunk(tail=False):
        for m in range(2 if tail else 4):
            v = 10
            a(f"s_add_u32 s57, s54, s45\ns_add_u32 m0, s57, {4096*m}\ns_add_u32 s58, s55, {18432*m}")
            if tail and m == 1:
                a(f"s_cmp_eq_u32 s33, 3\ns_cselect_b32 s59, {BIG}, 0\nv_or_b32 v16, s59, v10")
                v = 16
            a(f"buffer_load_dwordx4 v{v}, s[12:15], s58 offen lds")
        a("s_add_u32 s55, s55, 73728"); slot_next(a, 54)
    def w2_chunk(tag, tail=False):
        n = 3 if tail else 5
        for e in range(n):
            if (not tail and e == 4): a(f"s_cmp_ge_u32 s33, 2\ns_cbranch_scc1 L_w2skip_{tag}")
            if (tail and e == 2): a(f"s_cmp_ge_u32 s33, 1\ns_cbranch_scc1 L_w2skip_{tag}")
            a(f"s_add_u32 s57, s54, s45\ns_add_u32 m0, s57, {4096*e}\ns_add_u32 s58, s56, s{46+e}")
            a(f"buffer_load_dwordx4 v{11+e}, s[16:19], s58 offen lds")
        a(f"L_w2skip_{tag}:\ns_add_u32 s56, s56, 82944"); slot_next(a, 54)
    if not fused: pass
    cnt = [4]*8 + [2] + [4]*7 + [2]
    def issue(c, tag):
        if c < 8: w1_chunk()
        elif c == 8: w1_chunk(True)
        elif c < 16: w2_chunk(tag)
        elif c == 16: w2_chunk(tag, True)
    for c in range(4): issue(c, f"p{c}")
    def allowed(n):
        return sum(cnt[c] for c in range(n+1, min(n+4, 17)))
    a("s_mov_b32 s60, 0\nL_ld1:")
    a(f"s_waitcnt vmcnt({min(allowed(n) for n in range(0,4))})\ns_barrier")
    w1_chunk()
    a("s_add_u32 s60, s60, 1\ns_cmp_lt_u32 s60, 4\ns_cbranch_scc1 L_ld1")
    for n in range(4, 9):
        a(f"s_waitcnt vmcnt({allowed(n)})\ns_barrier")
        issue(n+4, f"q{n}")
    a("s_barrier\ns_barrier")
    a("s_mov_b32 s60, 0\nL_ld2:")
    a(f"s_waitcnt vmcnt({min(allowed(n) for n in range(9,12))})\ns_barrier")
    w2_chunk("l2")
    a("s_add_u32 s60, s60, 1\ns_cmp_lt_u32 s60, 3\ns_cbranch_scc1 L_ld2")
    if not fused:
        for n in range(12, 17):
            a(f"s_waitcnt vmcnt({allowed(n)})\ns_barrier")
            if n + 4 <= 16: issue(n+4, f"r{n}")
    else:
        a(f"s_waitcnt vmcnt({allowed(12)})\ns_barrier")
        issue(16, "r12")
        a("s_cmp_ge_u32 s33, 1\ns_cselect_b32 s61, 9216, 0")
        w_dma(a, 64, WF_OFF, "wf")
        a("s_waitcnt vmcnt(19)\ns_barrier\ns_waitcnt vmcnt(15)\ns_barrier\ns_waitcnt vmcnt(11)\ns_barrier")
        w_dma(a, 68, WO_OFF, "wo")
        a("s_waitcnt vmcnt(18)\ns_barrier")

def w_dma(a, sr, base, tag):
    for blk in range(2):
        a(f"s_add_u32 s57, s45, {base + blk*18432}")
        for e in range(5):
            if e == 4: a(f"s_cmp_ge_u32 s33, 2\ns_cbranch_scc1 L_wd_{tag}_{blk}")
            so = [f"{blk*18432}", f"{blk*18432}", None, f"{blk*18432+9216}", f"{blk*18432+9216}"][e]
            if so is None: a(f"s_add_u32 s58, s61, {blk*18432}")
            else: a(f"s_mov_b32 s58, {so}")
            a(f"s_add_u32 m0, s57, {4096*e}\ns_nop 0\nbuffer_load_dwordx4 v{21+e}, s[{sr}:{sr+3}], s58 offen lds")
        a(f"L_wd_{tag}_{blk}:")
    a(f"""
    s_add_u32 s57, s45, {base + 36864}
    v_add_u32 v1, 36864, v21
    v_add_u32 v2, 36864, v22
    s_mov_b32 m0, s57
    s_nop 0
    buffer_load_dwordx4 v1, s[{sr}:{sr+3}], 0 offen lds
    s_cmp_ge_u32 s33, 1
    s_cbranch_scc1 L_wd_{tag}_t
    s_add_u32 m0, s57, 4096
    s_nop 0
    buffer_load_dwordx4 v2, s[{sr}:{sr+3}], 0 offen lds
    L_wd_{tag}_t:
    """)

def flag_base(a, sreg):
    a(f"s_mul_i32 s{sreg}, s28, 640\ns_add_u32 s{sreg}, s{sreg}, {FL_WS}")

def flags_reset(a):
    a("s_cmp_lg_u32 s32, 0\ns_cbranch_scc1 L_noreset")
    flag_base(a, 39)
    a(f"""
    s_lshl_b32 s40, s29, 7
    s_add_u32 s39, s39, s40
    v_lshl_add_u32 v1, v0, 2, s39
    v_mov_b32 v2, {BIG}
    v_cmp_gt_u32 vcc, 32, v0
    v_mov_b32 v3, 0
    s_nop 0
    v_cndmask_b32 v1, v2, v1, vcc
    buffer_store_dword v3, v1, s[20:23], 0 offen sc1
    L_noreset:
    """)

def reset_count(a):
    a(f"""
    s_cmp_lg_u32 s32, 0
    s_cbranch_scc1 L_nocount
    v_cmp_eq_u32 vcc, 0, v0
    v_mov_b32 v18, s28
    v_lshlrev_b32 v18, 2, v18
    v_mov_b32 v19, {BIG}
    v_cndmask_b32 v18, v19, v18, vcc
    v_mov_b32 v19, 1
    buffer_atomic_add v19, v18, s[76:79], 0 offen sc1
    L_nocount:
    """)

def ready_load(a):
    a("v_mov_b32 v20, s28\nv_lshlrev_b32 v20, 2, v20\ns_cmp_lg_u32 s32, 0\ns_cbranch_scc1 L_nordy\nbuffer_load_dword v21, v20, s[76:79], 0 offen sc1\nL_nordy:")

def ready_wait(a):
    a(f"""
    s_cmp_lg_u32 s32, 0
    s_cbranch_scc1 L_rdy_done
    s_mov_b32 s40, 0
    L_rdy:
    s_waitcnt vmcnt(0)
    v_cmp_ne_u32 vcc, 5, v21
    s_add_u32 s40, s40, 1
    s_nop 0
    s_cmp_eq_u64 vcc, 0
    s_cbranch_scc1 L_rdy_done
    s_cmp_ge_u32 s40, {SPIN}
    s_cbranch_scc1 L_rdy_done
    buffer_load_dword v21, v20, s[76:79], 0 offen sc1
    s_branch L_rdy
    L_rdy_done:
    """)

def flags_set(a):
    flag_base(a, 39)
    a(f"""
    s_lshl_b32 s40, s29, 4
    s_add_u32 s39, s39, s40
    s_lshl_b32 s40, s32, 2
    s_add_u32 s39, s39, s40
    v_lshl_add_u32 v1, v0, 7, s39
    v_mov_b32 v2, {BIG}
    v_cmp_gt_u32 vcc, 5, v0
    v_mov_b32 v3, 1
    s_nop 0
    v_cndmask_b32 v1, v2, v1, vcc
    s_waitcnt vmcnt(0)
    buffer_store_dword v3, v1, s[20:23], 0 offen sc1
    """)

def ge_flags(a):
    a(f"""
    s_waitcnt vmcnt(0)
    s_barrier
    s_cmp_lg_u32 s32, 0
    s_cbranch_scc1 L_k1_end
    s_mul_i32 s39, s30, 25
    v_min_u32 v1, 24, v0
    v_add_u32 v1, s39, v1
    v_lshlrev_b32 v1, 2, v1
    s_mov_b32 s40, 0
    L_gerdy:
    buffer_load_dword v5, v1, s[76:79], 0 offen sc1
    s_add_u32 s40, s40, 1
    s_cmp_ge_u32 s40, {SPIN}
    s_cbranch_scc1 L_k1_end
    s_waitcnt vmcnt(0)
    v_cmp_ne_u32 vcc, 5, v5
    s_nop 1
    s_cmp_lg_u64 vcc, 0
    s_cbranch_scc1 L_gerdy
    s_mul_i32 s39, s30, 16000
    s_add_u32 s39, s39, {FL_WS + 80}
    v_lshl_add_u32 v1, v0, 7, s39
    v_add_u32 v2, 8192, v1
    v_mov_b32 v4, {BIG}
    v_cmp_gt_u32 vcc, 61, v0
    v_mov_b32 v3, 1
    s_nop 0
    v_cndmask_b32 v2, v4, v2, vcc
    buffer_store_dword v3, v1, s[20:23], 0 offen sc1
    buffer_store_dword v3, v2, s[20:23], 0 offen sc1
    """)

def k1_compute(a, store_flags="", fused=False):
    ACC = 32; BUF = [64, 84]
    a("s_mov_b32 s33, s32"); x_load(a)
    if fused: flags_reset(a)
    a(f"""
    s_and_b32 s33, s32, 1
    s_lshr_b32 s34, s32, 1
    v_and_b32 v1, 15, v0
    v_lshrrev_b32 v2, 4, v0
    ; vA0 = (8g + j/4)*64 + (g&1)*32 + 8*(j%4) + 2048*kh, xor 32*kh for own-tile-first order
    v_lshrrev_b32 v3, 2, v1
    v_lshl_add_u32 v3, v2, 3, v3
    v_lshlrev_b32 v3, 6, v3
    v_and_b32 v4, 1, v2
    v_lshl_add_u32 v3, v4, 5, v3
    v_and_b32 v4, 3, v1
    v_lshl_add_u32 v3, v4, 3, v3
    s_lshl_b32 s35, s33, 5
    v_xor_b32 v3, s35, v3
    s_lshl_b32 s35, s33, 11
    v_add_u32 v4, s35, v3
    v_xor_b32 v5, 32, v4
    s_mul_i32 s35, s34, 48
    v_add_u32 v6, s35, v1
    v_mul_u32_u24 v7, 608, v6
    v_lshl_add_u32 v7, v2, 4, v7
    s_mov_b32 s36, {RING}
    s_mov_b32 s37, s33
    s_mov_b32 s38, 0
    """)
    for i in range(24): a(f"v_mov_b32 v{ACC+i}, 0")
    def reads(m, buf):
        A = BUF[buf]; B = A + 8
        a(f"s_add_u32 s39, s37, {2*m}\ns_mul_i32 s40, s39, 57\ns_lshr_b32 s40, s40, 9\ns_lshl_b32 s40, s40, 5\ns_lshl_b32 s39, s39, 6\ns_add_u32 s39, s39, s40")
        a(f"v_add_u32 v10, s39, v7")
        for ct, va in ((0, 8), (1, 9)):
            for p in range(2): a(f"ds_read_b64_tr_b16 {vr(A+4*ct+2*p,2)}, v{va} offset:{4096*m+256*p}")
        for tt in range(3): a(f"ds_read_b128 {vr(B+4*tt)}, v10 offset:{9728*tt}")
    def mfmas(buf):
        A = BUF[buf]; B = A + 8
        for tt in range(3):
            for ct in range(2):
                c = ACC + 12*ct + 4*tt
                a(f"v_mfma_f32_16x16x32_bf16 {vr(c)}, {vr(A+4*ct)}, {vr(B+4*tt)}, {vr(c)}")
    def chunk(tail):
        a("s_barrier\nv_add_u32 v8, s36, v4\nv_add_u32 v9, s36, v5")
        if gp.PROF and not tail: a("s_cmp_lg_u32 s38, 0\ns_cbranch_scc1 L_not1\ns_memrealtime s[82:83]\nL_not1:")
        reads(0, 0); reads(1, 1)
        a("s_waitcnt lgkmcnt(7)"); mfmas(0)
        if not tail:
            reads(2, 0); a("s_waitcnt lgkmcnt(7)"); mfmas(1)
            reads(3, 1); a("s_waitcnt lgkmcnt(7)"); mfmas(0)
        a("s_waitcnt lgkmcnt(0)"); mfmas(1)
        a("s_add_u32 s37, s37, 8"); slot_next(a, 36)
    gp.T(a, 0)
    a("s_waitcnt vmcnt(0)")
    if fused: reset_count(a)
    a("L_c1:"); chunk(False)
    a("s_add_u32 s38, s38, 1\ns_cmp_lt_u32 s38, 8\ns_cbranch_scc1 L_c1")
    gp.T(a, 2)
    chunk(True)
    gp.T(a, 3)
    a(f"""
    s_barrier
    s_mul_i32 s39, s32, 3072
    v_lshlrev_b32 v11, 4, v0
    v_add_u32 v12, s39, v11
    s_xor_b32 s39, s32, 1
    s_mul_i32 s39, s39, 3072
    v_add_u32 v13, s39, v11
    s_nop 3
    """)
    for tt in range(3): a(f"ds_write_b128 v12, {vr(ACC+12+4*tt)} offset:{1024*tt}")
    a("s_waitcnt lgkmcnt(0)\ns_barrier")
    for tt in range(3): a(f"ds_read_b128 {vr(64+4*tt)}, v13 offset:{1024*tt}")
    a(f"""
    v_mul_u32_u24 v14, 80, v6
    v_lshl_add_u32 v14, v2, 3, v14
    s_lshl_b32 s39, s33, 5
    s_add_u32 s39, s39, {H_OFF}
    v_add_u32 v14, s39, v14
    s_mul_i32 s39, s31, 80
    s_sub_u32 s39, s39, 7
    v_add_u32 v15, s39, v6
    s_mov_b32 s40, {GC1}
    v_mov_b32 v16, {GC2}
    s_movk_i32 s41, 2000
    s_waitcnt lgkmcnt(0)
    """)
    for i in range(12): a(f"v_add_f32 v{ACC+i}, v{ACC+i}, v{64+i}")
    gelu(a, [ACC+i for i in range(12)], [64+i for i in range(12)], None, 40, 16)
    for tt in range(3):
        a(f"v_add_u32 v17, {16*tt}, v15\nv_cmp_gt_u32 vcc, s41, v17")
        a(f"v_cvt_pk_bf16_f32 v64, v{ACC+4*tt}, v{ACC+4*tt+1}\nv_cvt_pk_bf16_f32 v65, v{ACC+4*tt+2}, v{ACC+4*tt+3}")
        a(f"v_cndmask_b32 v{66+2*tt}, 0, v64, vcc\nv_cndmask_b32 v{67+2*tt}, 0, v65, vcc")
        a(f"ds_write_b64 v14, {vr(66+2*tt,2)} offset:{1280*tt}")
    ACC2 = 32
    a144_addr(a, 4, 0, 10, 11)
    a(f"""
    s_lshl_b32 s39, s32, 6
    v_add_u32 v5, 256, v4
    v_add_u32 v4, s39, v4
    v_mul_u32_u24 v6, 160, v1
    v_lshl_add_u32 v6, v2, 4, v6
    v_add_u32 v6, {H_OFF}, v6
    s_min_u32 s39, s32, 2
    s_mul_i32 s39, s39, 2560
    v_add_u32 v7, s39, v6
    s_mov_b32 s38, 0
    """)
    for i in range(28): a(f"v_mov_b32 v{ACC2+i}, 0")
    a("s_waitcnt lgkmcnt(0)")
    AB = [64, 92]
    def reads2(tap, buf):
        A = AB[buf]; B = A + 12; l = []
        for d in range(2):
            for p in range(2): l.append(f"ds_read_b64_tr_b16 {vr(A+4*d+2*p,2)}, v8 offset:{9216*tap+32*d+2304*p}")
        for tt in range(3): l.append(f"ds_read_b128 {vr(B+4*tt)}, v10 offset:{2560*tt+80*tap}")
        for p in range(2): l.append(f"ds_read_b64_tr_b16 {vr(A+8+2*p,2)}, v9 offset:{9216*tap+2304*p}")
        l.append(f"ds_read_b128 {vr(B+12)}, v11 offset:{80*tap}")
        return l
    def mf2(buf):
        A = AB[buf]; B = A + 12; l = []
        for tt in range(3):
            for d in range(2):
                c = ACC2 + 4*(3*d+tt); l.append(f"v_mfma_f32_16x16x32_bf16 {vr(c)}, {vr(A+4*d)}, {vr(B+4*tt)}, {vr(c)}")
        c = ACC2 + 24; l.append(f"v_mfma_f32_16x16x32_bf16 {vr(c)}, {vr(A+8)}, {vr(B+12)}, {vr(c)}")
        return l
    def chunk2(tail):
        a("s_barrier\nv_add_u32 v8, s36, v4\nv_add_u32 v9, s36, v5\nv_mov_b32 v10, v6\nv_mov_b32 v11, v7")
        r0 = reads2(0, 0)
        for x in r0: a(x)
        if tail:
            a("s_waitcnt lgkmcnt(0)")
            for x in mf2(0): a(x)
        else:
            r1 = reads2(1, 1)
            for x in r1[:5]: a(x)
            a("s_waitcnt lgkmcnt(5)")
            m0 = mf2(0); a(m0[0])
            for x in r1[5:]: a(x)
            for x in m0[1:]: a(x)
            a("s_waitcnt lgkmcnt(0)")
            for x in mf2(1): a(x)
            a("v_add_u32 v6, 160, v6\nv_add_u32 v7, 160, v7"); slot_next(a, 36)
    gp.T(a, 4)
    if fused: ready_load(a)
    a("L_c2:"); chunk2(False)
    a("s_add_u32 s38, s38, 1\ns_cmp_lt_u32 s38, 7\ns_cbranch_scc1 L_c2")
    gp.T(a, 5)
    if fused: ready_wait(a)
    chunk2(True)
    gp.T(a, 6)
    a(f"""
    v_lshrrev_b32 v3, 3, v1
    v_mul_u32_u24 v3, 11520, v3
    v_lshl_add_u32 v3, v2, 6, v3
    v_and_b32 v4, 7, v1
    v_lshl_add_u32 v3, v4, 3, v3
    s_mul_i32 s39, s28, 57600
    s_mul_i32 s40, s29, 2304
    s_add_u32 s39, s39, s40
    s_add_u32 s39, s39, {P_WS}
    v_add_u32 v3, s39, v3
    s_lshl_b32 s40, s32, 9
    v_add_u32 v4, s40, v3
    v_mov_b32 v9, {BIG}
    v_cmp_gt_u32 vcc, 8, v1
    s_min_u32 s41, s32, 2
    s_mul_i32 s41, s41, 23040
    v_cndmask_b32 v5, v9, v4, vcc
    s_add_u32 s41, s41, 2048
    v_add_u32 v6, s41, v3
    v_cndmask_b32 v7, v9, v6, vcc
    s_cmp_eq_u32 s32, 2
    s_cselect_b64 vcc, -1, 0
    v_cndmask_b32 v6, v6, v7, vcc
    s_cmp_eq_u32 s32, 3
    s_cselect_b64 vcc, -1, 0
    v_cndmask_b32 v6, v6, v9, vcc
    s_movk_i32 s42, 23040
    s_mov_b32 s43, 46080
    """)
    for t in range(7):
        c = ACC2 + 4*t
        a(f"v_cvt_pk_bf16_f32 v{64+2*t}, v{c}, v{c+1}\nv_cvt_pk_bf16_f32 v{65+2*t}, v{c+2}, v{c+3}")
    for d in range(2):
        for tt in range(3):
            t = 3*d + tt
            va, so = [(4, "0"), (4, "s42"), (5, "s43")][tt]
            a(f"buffer_store_dwordx2 {vr(64+2*t,2)}, v{va}, s[20:23], {so} offen offset:{256*d}{store_flags}")
    a(f"buffer_store_dwordx2 {vr(76,2)}, v6, s[20:23], 0 offen{store_flags}")

def k1_ge(a, store_flags="", fused=False):
    a("L_ge:\ns_sub_u32 s30, s2, 250\ns_waitcnt lgkmcnt(0)\ns_load_dwordx2 s[4:5], s[0:1], 24\ns_load_dwordx2 s[6:7], s[0:1], 40\ns_mul_i32 s37, s30, 2304\ns_waitcnt lgkmcnt(0)")
    srd(a, 8, 4, 2304, add="s37"); srd(a, 12, 6, 41472); srd(a, 20, 26, 0x1000000)
    if fused: srd(a, 76, 46, 256)
    dma_w144(a, "wg", 12, WF_OFF, 8, 32, 0, [1, 2, 3, 4, 5])
    a(f"""
    v_lshlrev_b32 v1, 4, v0
    s_lshl_b32 s39, s32, 10
    v_add_u32 v1, s39, v1
    s_add_u32 m0, s39, {F_OFF}
    s_cmp_ge_u32 s32, 3
    s_cbranch_scc1 L_ge_skip
    buffer_load_dwordx4 v1, s[8:11], 0 offen lds
    L_ge_skip:
    s_waitcnt vmcnt(0)
    s_barrier
    """)
    a144_addr(a, 4, 0, 10, 11); a144_tail_addr(a, 5, 0, 10, 11)
    a(f"""
    v_and_b32 v1, 15, v0
    v_lshrrev_b32 v2, 4, v0
    v_mul_u32_u24 v6, 288, v1
    v_add_u32 v6, {F_OFF}, v6
    v_lshl_add_u32 v7, v2, 3, v6
    v_add_u32 v7, 256, v7
    v_lshl_add_u32 v6, v2, 4, v6
    s_lshl_b32 s39, s32, 5
    v_add_u32 v4, s39, v4
    v_add_u32 v5, s39, v5
    v_mul_u32_u24 v8, 576, v1
    v_lshl_add_u32 v8, v2, 4, v8
    s_mul_i32 s40, s30, 4608
    s_add_u32 s40, s40, {GE_WS}
    s_lshl_b32 s41, s32, 6
    s_add_u32 s40, s40, s41
    v_add_u32 v8, s40, v8
    v_mov_b32 v9, {BIG}
    v_cmp_gt_u32 vcc, 8, v1
    s_mov_b32 s44, {TS}
    """)
    a("v_cndmask_b32 v8, v9, v8, vcc")
    load_rows_B(a, 64, 6, 7)
    for rep in range(2):
        if rep == 1: a("s_cmp_lg_u32 s32, 0\ns_cbranch_scc1 L_ge_done")
        proj_tile(a, 32, 84, 64, 4, 5, WF_OFF + 256*rep)
        a("s_nop 7")
        for i in range(4): a(f"v_mul_f32 v{36+i}, s44, v{32+i}")
        a(f"buffer_store_dwordx4 {vr(36)}, v8, s[20:23], 0 offen offset:{512*rep}{store_flags}\ns_nop 1")
    a("L_ge_done:")
    if fused:
        ge_flags(a)

def k1_compute_end(a):
    if gp.PROF:
        a("s_waitcnt vmcnt(0)"); gp.T(a, 7); a("s_cmp_lg_u32 s32, 0\ns_cbranch_scc1 L_nodump1"); gp.Tdump(a, 0, 8); a("L_nodump1:")
```

```python
from gen_parts import *
import gen_parts as gp

def k2_prologue(a):
    a(f"""
    s_cmp_ge_u32 s2, 250
    s_cbranch_scc1 L_k2_end
    s_load_dwordx2 s[4:5], s[0:1], 32
    s_load_dwordx4 s[24:27], s[0:1], 48
    s_load_dwordx2 s[6:7], s[0:1], 72
    v_lshrrev_b32 v1, 6, v0
    v_and_b32 v0, 63, v0
    v_readfirstlane_b32 s32, v1
    """)
    wgmap(a, "k2")
    a("s_waitcnt lgkmcnt(0)")
    srd(a, 8, 4, 41472); srd(a, 12, 24, 41472); srd(a, 16, 26, 4608000); srd(a, 20, 6, 0x1000000)

def k2_ge_loads(a, sc=""):
    a(f"""
    v_and_b32 v3, 7, v0
    v_mul_u32_u24 v3, 576, v3
    v_lshrrev_b32 v4, 4, v0
    s_mul_i32 s39, s30, 4608
    s_add_u32 s39, s39, {GE_WS}
    v_add_u32 v3, s39, v3
    v_lshl_add_u32 v5, v4, 4, v3
    v_lshl_add_u32 v3, v4, 5, v3
    """)
    for c in range(4):
        for h in range(2): a(f"buffer_load_dwordx4 {vr(16+8*c+4*h)}, v3, s[20:23], 0 offen offset:{128*c+16*h}{sc}")
    a(f"buffer_load_dwordx4 {vr(48)}, v5, s[20:23], 0 offen offset:512{sc}")

def k2_partial_loads(a, sc=""):
    a(f"""
    s_lshl_b32 s39, s32, 6
    v_add_u32 v6, s39, v0
    s_mul_i32 s40, s28, 5
    s_add_u32 s40, s40, s29
    s_mul_i32 s40, s40, 11520
    s_add_u32 s40, s40, {P_WS}
    v_lshl_add_u32 v7, v6, 3, s40
    v_mov_b32 v9, {BIG}
    s_movk_i32 s41, 288
    v_cmp_gt_u32 vcc, s41, v6
    s_movk_i32 s42, 4608
    s_movk_i32 s43, 9216
    v_cndmask_b32 v7, v9, v7, vcc
    """)
    for s_, (so, off) in enumerate([("0", 0), ("0", 2304), ("s42", 0), ("s42", 2304), ("s43", 0)]):
        a(f"buffer_load_dwordx2 {vr(52+2*s_,2)}, v7, s[20:23], {so} offen offset:{off}{sc}")

def k2_partial_sum(a):
    X = [64, 65, 66, 67]; T = [68, 69, 70, 71]
    a(f"""
    v_lshrrev_b32 v10, 5, v6
    v_lshlrev_b32 v10, 5, v10
    v_bfe_u32 v11, v6, 3, 2
    v_lshl_add_u32 v10, v11, 3, v10
    v_and_b32 v11, 7, v6
    v_mul_u32_u24 v11, 288, v11
    v_add_u32 v10, v10, v11
    v_add_u32 v10, {F_OFF}, v10
    v_mov_b32 v11, {F_OFF + 15*288}
    v_cndmask_b32 v10, v11, v10, vcc
    s_mov_b32 s40, {GC1}
    v_mov_b32 v12, {GC2}
    v_mov_b32 v13, 0xffff0000
    """)
    return X, T

def k2_partial_math(a, X, T):
    for s_ in range(5):
        r = 52 + 2*s_
        d = X if s_ == 0 else T
        a(f"v_lshlrev_b32 v{d[0]}, 16, v{r}\nv_and_b32 v{d[1]}, v13, v{r}\nv_lshlrev_b32 v{d[2]}, 16, v{r+1}\nv_and_b32 v{d[3]}, v13, v{r+1}")
        if s_ > 0:
            a(f"v_pk_add_f32 {vr(X[0],2)}, {vr(X[0],2)}, {vr(T[0],2)}\nv_pk_add_f32 {vr(X[2],2)}, {vr(X[2],2)}, {vr(T[2],2)}")
    gelu(a, X, T, None, 40, 12)
    a(f"v_cvt_pk_bf16_f32 v72, v{X[0]}, v{X[1]}\nv_cvt_pk_bf16_f32 v73, v{X[2]}, v{X[3]}\nds_write_b64 v10, v[72:73]")

def k2_fe(a):
    a144_addr(a, 4, 0, 10, 11); a144_tail_addr(a, 5, 0, 10, 11)
    a(f"""
    v_and_b32 v1, 15, v0
    v_lshrrev_b32 v2, 4, v0
    v_mul_u32_u24 v6, 288, v1
    v_add_u32 v6, {F_OFF}, v6
    v_lshl_add_u32 v7, v2, 3, v6
    v_add_u32 v7, 256, v7
    v_lshl_add_u32 v6, v2, 4, v6
    s_lshl_b32 s39, s32, 5
    v_add_u32 v14, s39, v4
    v_add_u32 v15, s39, v5
    v_mul_u32_u24 v8, 576, v1
    v_lshl_add_u32 v8, v2, 4, v8
    s_lshl_b32 s41, s32, 6
    s_add_u32 s41, s41, {FE_OFF}
    v_add_u32 v8, s41, v8
    s_mov_b32 s44, {TS}
    """)

def k2_fe_run(a):
    load_rows_B(a, 64, 6, 7)
    for rep in range(2):
        if rep == 1: a("s_cmp_lg_u32 s32, 7\ns_cbranch_scc1 L_fe_done")
        proj_tile(a, 84, 92, 64, 14, 15, WF_OFF + 32*rep)
        a("s_nop 7")
        for i in range(4): a(f"v_mul_f32 v{88+i}, s44, v{84+i}")
        a(f"ds_write_b128 v8, {vr(88)} offset:{64*rep}")
    a("L_fe_done:")

def interleave(main, extra, every):
    out = []; e = list(extra)
    for i, x in enumerate(main):
        out.append(x)
        if e and (i + 1) % every == 0: out.append(e.pop(0))
    return out + e

def k2_joint(a, st="", osrd=16):
    GE, ACC, AB, FE = 16, 52, [88, 124], 160
    BB = [196, 200]
    a(f"""
    v_lshrrev_b32 v6, 3, v1
    s_lshl_b32 s39, s32, 1
    v_add_u32 v6, s39, v6
    v_mul_u32_u24 v6, 576, v6
    v_add_u32 v6, {FE_OFF}, v6
    v_lshl_add_u32 v7, v2, 4, v6
    v_lshl_add_u32 v6, v2, 5, v6
    v_add_u32 v4, {WO_OFF}, v4
    v_add_u32 v5, {WO_OFF}, v5
    """)
    for c in range(4):
        for h in range(2): a(f"ds_read_b128 {vr(FE+8*c+4*h)}, v6 offset:{128*c+16*h}")
    a(f"ds_read_b128 {vr(FE+32)}, v7 offset:512")
    def areads(c):
        A = AB[c % 2]; l = []
        for vt in range(9):
            if c < 4:
                for p in range(2): l.append(f"ds_read_b64_tr_b16 {vr(A+4*vt+2*p,2)}, v4 offset:{32*vt + c*32*288 + p*2304}")
            else:
                l.append(f"ds_read_b64_tr_b16 {vr(A+4*vt,2)}, v5 offset:{32*vt}")
        return l
    def mf(c):
        A = AB[c % 2]; B = BB[c % 2]; l = []
        for vt in range(9):
            src = "0" if c == 0 else vr(ACC+4*vt)
            if c < 4: l.append(f"v_mfma_f32_16x16x32_bf16 {vr(ACC+4*vt)}, {vr(A+4*vt)}, {vr(B)}, {src}")
            else: l.append(f"v_mfma_f32_16x16x16_bf16 {vr(ACC+4*vt)}, {vr(A+4*vt,2)}, {vr(B,2)}, {src}")
        return l
    def tanh(c):
        n = 8 if c < 4 else 4
        x = [GE + 8*c + i for i in range(n)]; B = BB[c % 2]; l = []
        for i in range(n): l.append(f"v_exp_f32 v{x[i]}, v{x[i]}")
        for i in range(0, n, 2): l.append(f"v_pk_add_f32 {vr(x[i],2)}, {vr(x[i],2)}, 1.0 op_sel_hi:[1,0]")
        for i in range(n): l.append(f"v_rcp_f32 v{x[i]}, v{x[i]}")
        for i in range(0, n, 2): l.append(f"v_pk_fma_f32 {vr(x[i],2)}, {vr(x[i],2)}, s[46:47], 1.0 op_sel_hi:[1,1,0]")
        for i in range(0, n, 2): l.append(f"v_cvt_pk_bf16_f32 v{B+i//2}, v{x[i]}, v{x[i+1]}")
        return l
    a(f"""
    s_mov_b32 s46, 0xc0000000
    s_mov_b32 s47, 0xc0000000
    s_mul_i32 s39, s30, 1000
    s_mul_i32 s40, s31, 40
    s_add_u32 s39, s39, s40
    s_lshl_b32 s40, s29, 3
    s_add_u32 s39, s39, s40
    s_lshl_b32 s40, s32, 1
    s_add_u32 s39, s39, s40
    s_mul_i32 s39, s39, 2304
    v_mul_u32_u24 v8, 288, v1
    v_add_u32 v8, s39, v8
    v_lshl_add_u32 v9, v2, 3, v8
    v_and_b32 v10, 1, v2
    v_lshl_add_u32 v8, v10, 5, v8
    v_lshrrev_b32 v10, 1, v2
    v_lshl_add_u32 v8, v10, 4, v8
    s_waitcnt vmcnt(0) lgkmcnt(0)
    """)
    for i in range(0, 36, 2): a(f"v_pk_add_f32 {vr(GE+i,2)}, {vr(GE+i,2)}, {vr(FE+i,2)}")
    for x in areads(0)[:15]: a(x)
    t = tanh(0)
    for x in interleave(t[:8], areads(0)[15:], 2): a(x)
    for x in t[8:]: a(x)
    for c in range(1, 5):
        a("s_waitcnt lgkmcnt(0)")
        r = areads(c)
        for x in r[:15]: a(x)
        t = tanh(c); m = mf(c-1)
        head = interleave(t[:8] if c < 4 else t[:4], r[15:], 2)
        k = 8 if c < 4 else 4
        for x in interleave(head + t[k:], m, 3 if c < 4 else 1): a(x)
    a("s_waitcnt lgkmcnt(0)\ns_nop 1")
    for x in mf(4): a(x)
    a("s_nop 1")
    for p in range(4):
        R = 160 + 4*p
        for h in range(2):
            c = ACC + 4*(2*p+h)
            a(f"v_cvt_pk_bf16_f32 v{R+2*h}, v{c}, v{c+1}\nv_cvt_pk_bf16_f32 v{R+2*h+1}, v{c+2}, v{c+3}")
        a(f"s_nop 1\nv_permlane16_swap_b32 v{R}, v{R+2}\nv_permlane16_swap_b32 v{R+1}, v{R+3}")
        a(f"s_nop 1\nbuffer_store_dwordx4 {vr(R)}, v8, s[{osrd}:{osrd+3}], 0 offen offset:{64*p}{st}")
    c = ACC + 32
    a(f"v_cvt_pk_bf16_f32 v176, v{c}, v{c+1}\nv_cvt_pk_bf16_f32 v177, v{c+2}, v{c+3}")
    a(f"buffer_store_dwordx2 v[176:177], v9, s[{osrd}:{osrd+3}], 0 offen offset:256{st}")

def k2_standalone(a):
    k2_prologue(a); gp.T(a, 0)
    a("s_cmp_ge_u32 s32, 5\ns_cbranch_scc1 L_k2_nopart")
    k2_partial_loads(a)
    a("L_k2_nopart:\ns_cmp_ge_u32 s32, 4\ns_cbranch_scc1 L_k2_noge")
    k2_ge_loads(a)
    a("L_k2_noge:")
    dma_w144(a, "wf", 8, WF_OFF, 8, 32, 0, [1, 2, 3, 4, 5])
    dma_w144(a, "wo", 12, WO_OFF, 8, 32, 0, [1, 2, 3, 4, 5])
    a("s_cmp_ge_u32 s32, 5\ns_cbranch_scc1 L_k2_nosum")
    a("s_lshl_b32 s39, s32, 6\nv_add_u32 v6, s39, v0\ns_movk_i32 s41, 288\nv_cmp_gt_u32 vcc, s41, v6\ns_nop 1")
    X, T = k2_partial_sum(a)
    a("s_waitcnt vmcnt(10)")
    gp.T(a, 1)
    k2_partial_math(a, X, T)
    a("L_k2_nosum:")
    k2_fe(a)
    a("s_waitcnt vmcnt(5) lgkmcnt(0)\ns_barrier")
    gp.T(a, 2)
    k2_fe_run(a)
    gp.T(a, 3)
    a("s_waitcnt vmcnt(0) lgkmcnt(0)\ns_barrier\ns_cmp_ge_u32 s32, 4\ns_cbranch_scc1 L_k2_end")
    gp.T(a, 4)
    k2_joint(a)
    if gp.PROF:
        gp.T(a, 5); a("s_waitcnt vmcnt(0)"); gp.T(a, 6); a("s_cmp_lg_u32 s32, 0\ns_cbranch_scc1 L_k2_end"); gp.Tdump(a, 1, 7)
    a("L_k2_end:\ns_endpgm")

SPIN = 400000
def k2_poll(a):
    a(f"""
    s_cmp_lg_u32 s32, 0
    s_cbranch_scc1 L_poll_done
    s_mul_i32 s39, s28, 640
    s_lshl_b32 s40, s29, 7
    s_add_u32 s39, s39, s40
    s_add_u32 s39, s39, {FL_WS}
    v_min_u32 v1, 20, v0
    v_lshl_add_u32 v1, v1, 2, s39
    s_mov_b32 s40, 0
    L_poll:
    buffer_load_dword v5, v1, s[20:23], 0 offen sc1
    s_add_u32 s40, s40, 1
    s_cmp_ge_u32 s40, {SPIN}
    s_cbranch_scc1 L_poll_done
    s_waitcnt vmcnt(0)
    v_cmp_ne_u32 vcc, 1, v5
    s_nop 1
    s_cmp_lg_u64 vcc, 0
    s_cbranch_scc1 L_poll
    L_poll_done:
    """)

def k2_fused(a):
    a("L_k2:")
    k2_poll(a)
    a("s_barrier")
    gp.T(a, 8)
    a("s_cmp_ge_u32 s32, 5\ns_cbranch_scc1 L_k2_nosum")
    k2_partial_loads(a, " sc1")
    a("s_cmp_ge_u32 s32, 4\ns_cbranch_scc1 L_k2_noge")
    k2_ge_loads(a, " sc1")
    a("L_k2_noge:")
    X, T = k2_partial_sum(a)
    a("s_cmp_ge_u32 s32, 4\ns_cbranch_scc1 L_k2_w4\ns_waitcnt vmcnt(9)\ns_branch L_k2_go\nL_k2_w4:\ns_waitcnt vmcnt(0)\nL_k2_go:")
    gp.T(a, 9)
    k2_partial_math(a, X, T)
    a("L_k2_nosum:")
    k2_fe(a)
    a("s_cmp_lt_u32 s32, 4\ns_cbranch_scc1 L_k2_nw\ns_waitcnt vmcnt(0)\nL_k2_nw:\ns_waitcnt lgkmcnt(0)\ns_barrier")
    gp.T(a, 10)
    k2_fe_run(a)
    a("s_waitcnt lgkmcnt(0)\ns_barrier\ns_cmp_ge_u32 s32, 4\ns_cbranch_scc1 L_k1_end")
    gp.T(a, 11)
    k2_joint(a, osrd=72)
    if gp.PROF:
        gp.T(a, 12); a("s_waitcnt vmcnt(0)"); gp.T(a, 13); a("s_cmp_lg_u32 s32, 0\ns_cbranch_scc1 L_k1_end"); gp.Tdump(a, 0, 11)
```

```python
from asmlib import *
X_OFF, RING, SLOT, NSLOT, H_OFF = 0, 61440, 18432, 5, 153600
LDS1 = 162560
WF_OFF, WO_OFF, F_OFF, FE_OFF = 0, 98304, 41984, 46592
LDS2 = 140288
P_WS, GE_WS = 0, 3145728
FL_WS = 0x380000
BIG = 0x80000000
LOG2E = 1.4426950408889634
import struct
def f2u(x): return struct.unpack("<I", struct.pack("<f", x))[0]
GC1 = f2u(-2 * 0.7978845608028654 * LOG2E); GC2 = f2u(-2 * 0.7978845608028654 * LOG2E * 0.044715)
TS = f2u(2 * LOG2E)

def vr(b, n=4): return f"v[{b}:{b+n-1}]"

def srd(a, d, p, nbytes, add=None):
    if add is None:
        a(f"s_mov_b32 s{d}, s{p}\ns_and_b32 s{d+1}, s{p+1}, 0xffff")
    else:
        a(f"s_add_u32 s{d}, s{p}, {add}\ns_addc_u32 s{d+1}, s{p+1}, 0\ns_and_b32 s{d+1}, s{d+1}, 0xffff")
    a(f"s_mov_b32 s{d+2}, {nbytes}\ns_mov_b32 s{d+3}, 0x20000")

def wgmap(a, tag):
    a(f"""
    s_and_b32 s33, s2, 7
    s_lshr_b32 s34, s2, 3
    s_mul_i32 s35, s34, 52
    s_lshr_b32 s35, s35, 8
    s_mul_i32 s36, s35, 5
    s_sub_u32 s29, s34, s36
    s_mul_i32 s28, s33, 6
    s_add_u32 s28, s28, s35
    s_cmp_lt_u32 s2, 240
    s_cbranch_scc1 L_map_{tag}
    s_sub_u32 s33, s2, 240
    s_cmp_ge_u32 s33, 5
    s_cselect_b32 s35, 1, 0
    s_add_u32 s28, s35, 48
    s_mul_i32 s35, s35, 5
    s_sub_u32 s29, s33, s35
    L_map_{tag}:
    s_cmp_ge_u32 s28, 25
    s_cselect_b32 s30, 1, 0
    s_mul_i32 s33, s30, 25
    s_sub_u32 s31, s28, s33
    """)

def gelu(a, x, t0, t1, sc1, sc2):
    for r, u in zip(x, t0): a(f"v_mul_f32 v{u}, v{r}, v{r}")
    for r, u in zip(x, t0): a(f"v_fma_f32 v{u}, v{u}, v{sc2}, s{sc1}")
    for r, u in zip(x, t0): a(f"v_mul_f32 v{u}, v{u}, v{r}")
    for u in t0: a(f"v_exp_f32 v{u}, v{u}")
    if len(x) < 2: a("s_nop 0")
    for u in t0: a(f"v_add_f32 v{u}, 1.0, v{u}")
    for u in t0: a(f"v_rcp_f32 v{u}, v{u}")
    if len(x) < 2: a("s_nop 0")
    for r, u in zip(x, t0): a(f"v_mul_f32 v{r}, v{r}, v{u}")

def dma_w144(a, tag, srdreg, ldsbase, nw, swave, vlane, vt, first=0):
    j, rho, u, k = vt[:4]
    a(f"""
    s_sub_u32 s41, s{swave}, {first}
    s_lshl_b32 s40, s41, 6
    v_add_u32 v{j}, s40, v{vlane}
    s_lshl_b32 s41, s41, 10
    s_add_u32 s41, s41, {ldsbase}
    s_mov_b32 s42, 0
    s_movk_i32 s43, 3641
    s_cmp_eq_u32 s{swave}, {first}
    s_cselect_b32 s44, {40//nw+1}, {40//nw}
    L_w144_{tag}:
    v_mul_u32_u24 v{rho}, s43, v{j}
    v_lshrrev_b32 v{rho}, 16, v{rho}
    v_mul_u32_u24 v{u}, 18, v{rho}
    v_sub_u32 v{u}, v{j}, v{u}
    v_and_b32 v{k}, 4, v{rho}
    v_lshlrev_b32 v{k}, 1, v{k}
    v_and_b32 v{vt[4]}, 8, v{rho}
    v_lshrrev_b32 v{vt[4]}, 1, v{vt[4]}
    v_or_b32 v{k}, v{k}, v{vt[4]}
    v_and_b32 v{vt[4]}, 0xf3, v{rho}
    v_or_b32 v{k}, v{k}, v{vt[4]}
    s_mov_b32 m0, s41
    v_add_u32 v{j}, {64*nw}, v{j}
    v_mul_u32_u24 v{k}, 288, v{k}
    v_lshl_add_u32 v{k}, v{u}, 4, v{k}
    buffer_load_dwordx4 v{k}, s[{srdreg}:{srdreg+3}], 0 offen lds
    s_add_u32 s41, s41, {1024*nw}
    s_add_u32 s42, s42, 1
    s_cmp_lt_u32 s42, s44
    s_cbranch_scc1 L_w144_{tag}
    """)

def a144_addr(a, vdst, vlane, t0, t1):
    a(f"""
    v_lshrrev_b32 v{t0}, 5, v{vlane}
    v_lshlrev_b32 v{t0}, 4, v{t0}
    v_bfe_u32 v{t1}, v{vlane}, 4, 1
    v_lshl_add_u32 v{t0}, v{t1}, 2, v{t0}
    v_bfe_u32 v{t1}, v{vlane}, 2, 2
    v_add_u32 v{t0}, v{t0}, v{t1}
    v_mul_u32_u24 v{t0}, 288, v{t0}
    v_and_b32 v{t1}, 3, v{vlane}
    v_lshl_add_u32 v{vdst}, v{t1}, 3, v{t0}
    """)

def a144_tail_addr(a, vdst, vlane, t0, t1):
    a(f"""
    v_bfe_u32 v{t0}, v{vlane}, 4, 1
    v_lshlrev_b32 v{t0}, 1, v{t0}
    v_bfe_u32 v{t1}, v{vlane}, 5, 1
    v_or_b32 v{t0}, v{t0}, v{t1}
    v_bfe_u32 v{t1}, v{vlane}, 2, 2
    v_lshl_add_u32 v{t0}, v{t0}, 2, v{t1}
    v_add_u32 v{t0}, 128, v{t0}
    v_mul_u32_u24 v{t0}, 288, v{t0}
    v_and_b32 v{t1}, 3, v{vlane}
    v_lshl_add_u32 v{vdst}, v{t1}, 3, v{t0}
    """)

def proj_tile(a, acc, A, B, vA, vAt, aoff):
    for c in range(4):
        for p in range(2):
            a(f"ds_read_b64_tr_b16 {vr(A+4*c+2*p,2)}, v{vA} offset:{aoff + c*32*288 + p*2304}")
    a(f"ds_read_b64_tr_b16 {vr(A+16,2)}, v{vAt} offset:{aoff}")
    for c in range(4):
        a(f"s_waitcnt lgkmcnt({7-2*c})")
        src = "0" if c == 0 else vr(acc)
        a(f"v_mfma_f32_16x16x32_bf16 {vr(acc)}, {vr(A+4*c)}, {vr(B+4*c)}, {src}")
    a("s_waitcnt lgkmcnt(0)\ns_nop 7")
    a(f"v_mfma_f32_16x16x16_bf16 {vr(acc)}, {vr(A+16,2)}, {vr(B+16,2)}, {vr(acc)}")

def load_rows_B(a, B, vB, vBt):
    for c in range(4): a(f"ds_read_b128 {vr(B+4*c)}, v{vB} offset:{64*c}")
    a(f"ds_read_b64 {vr(B+16,2)}, v{vBt}")

PROF = False
TS_WS = 0x400000
def setprof(p):
    global PROF
    PROF = p
TMAP = None
def T(a, i):
    if TMAP is not None:
        if i not in TMAP: return
        i = TMAP[i]
    if PROF: a(f"s_memrealtime s[{80+2*i}:{81+2*i}]")
def Tdump(a, role, n, srdreg=20, base=TS_WS):
    if not PROF: return
    a("s_waitcnt lgkmcnt(0)\nv_mov_b32 v200, 0\nv_and_b32 v201, 63, v0")
    for i in range(n):
        a(f"v_mov_b32 v202, s{80+2*i}\nv_cmp_eq_u32 vcc, {i}, v201\ns_nop 1\nv_cndmask_b32 v200, v200, v202, vcc")
    a(f"s_lshl_b32 s62, s2, 7\ns_add_u32 s62, s62, {base + role*64}\nv_lshl_add_u32 v201, v201, 2, s62\nv_mov_b32 v202, {BIG}\nv_cmp_gt_u32 vcc, 16, v0\nv_and_b32 v203, 63, v0\nv_cmp_gt_u32 vcc, 16, v203\ns_nop 1\nv_cndmask_b32 v201, v202, v201, vcc")
    a(f"buffer_store_dword v200, v201, s[{srdreg}:{srdreg+3}], 0 offen")
```

```python
import sys
from gen_k1 import *
from gen_k2 import *
import gen_k1b
import gen_parts as gp
NAME = "standalone__seq2seq_rnn_t_joint__speech_kernel"
def two_kernel():
    hdr = f"""; @launch kernel={NAME} grid=(252,1,1) block=(512,1,1) lds={LDS1}
; @launch kernel=joint_kernel grid=(250,1,1) block=(512,1,1) lds={LDS2}
.amdgcn_target "amdgcn-amd-amdhsa--gfx950"
.text
"""
    a = Asm()
    k1_prologue(a); k1_compute(a); k1_compute_end(a); a("s_endpgm"); k1_loader(a); a("s_endpgm"); k1_ge(a); a("L_k1_end:\ns_endpgm")
    b = Asm(); k2_standalone(b)
    return hdr + khead(NAME) + a.text() + khead("joint_kernel") + b.text() + '.section .rodata,"a"\n' + kdesc(NAME, 208 if gp.PROF else 128) + kdesc("joint_kernel", 208)
def fused():
    hdr = f"""; @launch grid=(252,1,1) block=(512,1,1) lds={LDS1}
.amdgcn_target "amdgcn-amd-amdhsa--gfx950"
.text
"""
    gp.TMAP = {0:0, 2:2, 4:3, 6:4, 8:5, 9:6, 10:7, 11:8, 12:9, 13:10}
    a = Asm()
    k1_prologue(a, True); gen_k1b.compute(a, " sc1")
    gp.T(a, 7)
    flags_set(a)
    a("s_branch L_k2")
    gen_k1b.loader(a)
    k2_fused(a)
    a("s_endpgm")
    k1_ge(a, " sc1", True); a("L_k1_end:\ns_endpgm")
    return hdr + khead(NAME) + a.text() + '.section .rodata,"a"\n' + kdesc(NAME, 208)
if __name__ == "__main__":
    out = sys.argv[1]
    gp.setprof("prof" in sys.argv[2:])
    open(out, "w").write(fused() if "fused" in sys.argv[2:] else two_kernel())
```

```python
from gen_parts import *
SPIN = 400000
import os
EXP = os.environ.get('EXP', '')
import gen_parts as gp

def k1_prologue(a, fused=False):
    a(f"""
    s_cmp_ge_u32 s2, 252
    s_cbranch_scc1 L_k1_end
    s_load_dwordx4 s[4:7], s[0:1], 0
    s_load_dwordx2 s[24:25], s[0:1], 16
    s_load_dwordx2 s[26:27], s[0:1], 72
    v_lshrrev_b32 v1, 6, v0
    v_and_b32 v0, 63, v0
    v_readfirstlane_b32 s32, v1
    """)
    if fused: a("s_load_dwordx2 s[44:45], s[0:1], 32\ns_load_dwordx4 s[48:51], s[0:1], 48\ns_load_dwordx2 s[46:47], s[0:1], 64")
    a("s_cmp_ge_u32 s2, 250\ns_cbranch_scc1 L_ge")
    wgmap(a, "k1")
    a("s_mul_i32 s37, s30, 1152000\ns_waitcnt lgkmcnt(0)")
    srd(a, 8, 4, 1152000, add="s37")
    srd(a, 12, 6, 622080); srd(a, 16, 24, 622080); srd(a, 20, 26, 0x1000000)
    if fused: fused_srds(a)
    a("s_cmp_ge_u32 s32, 4\ns_cbranch_scc1 L_loader")

def fused_srds(a):
    srd(a, 64, 44, 41472); srd(a, 68, 48, 41472); srd(a, 72, 50, 4608000); srd(a, 76, 46, 256)

def signal(a, idx_expr, tag):
    a(f"""
    s_waitcnt vmcnt(0)
    v_mov_b32 v1, {BIG}
    v_mov_b32 v2, {idx_expr}
    v_lshlrev_b32 v2, 2, v2
    v_cmp_eq_u32 vcc, 0, v0
    v_mov_b32 v3, 1
    s_nop 0
    v_cndmask_b32 v1, v1, v2, vcc
    buffer_atomic_add v3, v1, s[76:79], 0 offen sc1
    """)

def slot_next(a, s):
    a(f"s_add_u32 s{s}, s{s}, {SLOT}\ns_cmp_ge_u32 s{s}, {RING + NSLOT*SLOT}\ns_cselect_b32 s{s}, {RING}, s{s}")

def x_load(a):
    a(f"""
    s_lshl_b32 s34, s33, 6
    v_add_u32 v1, s34, v0
    s_mul_i32 s34, s31, 46080
    s_sub_u32 s34, s34, 6048
    s_mov_b32 s35, -38
    s_mov_b32 s36, -32
    s_movk_i32 s38, 1725
    s_lshl_b32 s39, s33, 10
    s_mov_b32 s40, 0
    v_mov_b32 v9, {BIG}
    L_xload:
    v_mul_u32_u24 v2, s38, v1
    v_lshrrev_b32 v2, 16, v2
    v_mad_i32_i24 v3, v2, s35, v1
    v_lshl_add_u32 v4, v1, 4, s34
    v_mad_i32_i24 v4, v2, s36, v4
    v_cmp_lt_u32 vcc, 35, v3
    v_cmp_gt_i32 s[42:43], 0, v4
    s_mov_b32 m0, s39
    v_add_u32 v1, 256, v1
    s_or_b64 vcc, vcc, s[42:43]
    s_add_u32 s39, s39, 4096
    v_cndmask_b32 v4, v4, v9, vcc
    s_add_u32 s40, s40, 1
    buffer_load_dwordx4 v4, s[8:11], 0 offen lds
    s_cmp_lt_u32 s40, 15
    s_cbranch_scc1 L_xload
    """)

def k1_loader(a, fused=False):
    a(f"""
    L_loader:
    s_sub_u32 s33, s32, 4
    v_mov_b32 v9, {BIG}
    v_lshrrev_b32 v2, 2, v0
    v_mul_u32_u24 v2, 288, v2
    v_lshrrev_b32 v3, 4, v0
    v_and_b32 v3, 2, v3
    v_and_b32 v4, 3, v0
    v_xor_b32 v3, v3, v4
    v_lshl_add_u32 v2, v3, 4, v2
    s_lshl_b32 s41, s29, 6
    v_add_u32 v10, s41, v2
    s_cmp_eq_u32 s29, 4
    s_cselect_b32 s41, 1, 100
    v_cmp_lt_u32 vcc, s41, v3
    s_mul_i32 s44, s33, 4608
    s_lshl_b32 s45, s33, 10
    v_cndmask_b32 v10, v10, v9, vcc
    """)
    for e in range(5):
        a(f"""
        s_add_u32 s52, s33, {4*e}
        s_cmp_ge_u32 s52, 9
        s_cselect_b32 s53, 9, 0
        s_cselect_b32 s{46+e}, 41472, 0
        s_sub_u32 s52, s52, s53
        s_lshl_b32 s52, s52, 6
        v_add_u32 v1, s52, v0
        v_mul_u32_u24 v2, 3641, v1
        v_lshrrev_b32 v2, 16, v2
        v_mul_u32_u24 v3, 18, v2
        v_sub_u32 v3, v1, v3
        v_and_b32 v4, 4, v2
        v_lshlrev_b32 v4, 1, v4
        v_and_b32 v5, 8, v2
        v_lshrrev_b32 v5, 1, v5
        v_or_b32 v4, v4, v5
        v_and_b32 v5, 0x13, v2
        v_or_b32 v4, v4, v5
        v_mul_u32_u24 v{21+e}, 288, v4
        v_lshl_add_u32 v{21+e}, v3, 4, v{21+e}
        s_cmp_eq_u32 s29, 4
        s_cselect_b32 s53, 15, 100
        v_cmp_lt_u32 vcc, s53, v4
        s_lshl_b32 s53, s29, 5
        v_add_u32 v4, s53, v4
        v_mul_u32_u24 v4, 288, v4
        v_lshl_add_u32 v4, v3, 4, v4
        v_cndmask_b32 v{11+e}, v4, v9, vcc
        """)
    a(f"s_mov_b32 s54, {RING}\ns_mov_b32 s55, s44\ns_mov_b32 s56, 0")
    def w1_chunk(tail=False):
        for m in range(2 if tail else 4):
            v = 10
            a(f"s_add_u32 s57, s54, s45\ns_add_u32 m0, s57, {4096*m}\ns_add_u32 s58, s55, {18432*m}")
            if tail and m == 1:
                a(f"s_cmp_eq_u32 s33, 3\ns_cselect_b32 s59, {BIG}, 0\nv_or_b32 v16, s59, v10")
                v = 16
            if 'nol1' not in EXP: a(f"buffer_load_dwordx4 v{v}, s[12:15], s58 offen lds")
        a("s_add_u32 s55, s55, 73728"); slot_next(a, 54)
    def w2_chunk(tag, tail=False):
        n = 3 if tail else 5
        for e in range(n):
            if (not tail and e == 4): a(f"s_cmp_ge_u32 s33, 2\ns_cbranch_scc1 L_w2skip_{tag}")
            if (tail and e == 2): a(f"s_cmp_ge_u32 s33, 1\ns_cbranch_scc1 L_w2skip_{tag}")
            a(f"s_add_u32 s57, s54, s45\ns_add_u32 m0, s57, {4096*e}\ns_add_u32 s58, s56, s{46+e}")
            if 'nol2' not in EXP: a(f"buffer_load_dwordx4 v{11+e}, s[16:19], s58 offen lds")
        a(f"L_w2skip_{tag}:\ns_add_u32 s56, s56, 82944"); slot_next(a, 54)
    if not fused: pass
    cnt = [4]*8 + [2] + [4]*7 + [2]
    def issue(c, tag):
        if c < 8: w1_chunk()
        elif c == 8: w1_chunk(True)
        elif c < 16: w2_chunk(tag)
        elif c == 16: w2_chunk(tag, True)
    for c in range(4): issue(c, f"p{c}")
    def allowed(n):
        return sum(cnt[c] for c in range(n+1, min(n+4, 17)))
    a("s_mov_b32 s60, 0\nL_ld1:")
    a(f"s_waitcnt vmcnt({min(allowed(n) for n in range(0,4))})\ns_barrier")
    w1_chunk()
    a("s_add_u32 s60, s60, 1\ns_cmp_lt_u32 s60, 4\ns_cbranch_scc1 L_ld1")
    for n in range(4, 9):
        a(f"s_waitcnt vmcnt({allowed(n)})\ns_barrier")
        issue(n+4, f"q{n}")
    a("s_barrier\ns_barrier")
    a("s_mov_b32 s60, 0\nL_ld2:")
    a(f"s_waitcnt vmcnt({min(allowed(n) for n in range(9,12))})\ns_barrier")
    w2_chunk("l2")
    a("s_add_u32 s60, s60, 1\ns_cmp_lt_u32 s60, 3\ns_cbranch_scc1 L_ld2")
    if not fused:
        for n in range(12, 17):
            a(f"s_waitcnt vmcnt({allowed(n)})\ns_barrier")
            if n + 4 <= 16: issue(n+4, f"r{n}")
    else:
        a(f"s_waitcnt vmcnt({allowed(12)})\ns_barrier")
        issue(16, "r12")
        a("s_cmp_ge_u32 s33, 1\ns_cselect_b32 s61, 9216, 0")
        w_dma(a, 64, WF_OFF, "wf")
        a("s_waitcnt vmcnt(19)\ns_barrier\ns_waitcnt vmcnt(15)\ns_barrier\ns_waitcnt vmcnt(11)\ns_barrier")
        w_dma(a, 68, WO_OFF, "wo")
        a("s_waitcnt vmcnt(18)\ns_barrier")

def w_dma(a, sr, base, tag):
    for blk in range(2):
        a(f"s_add_u32 s57, s45, {base + blk*18432}")
        for e in range(5):
            if e == 4: a(f"s_cmp_ge_u32 s33, 2\ns_cbranch_scc1 L_wd_{tag}_{blk}")
            so = [f"{blk*18432}", f"{blk*18432}", None, f"{blk*18432+9216}", f"{blk*18432+9216}"][e]
            if so is None: a(f"s_add_u32 s58, s61, {blk*18432}")
            else: a(f"s_mov_b32 s58, {so}")
            a(f"s_add_u32 m0, s57, {4096*e}\ns_nop 0\nbuffer_load_dwordx4 v{21+e}, s[{sr}:{sr+3}], s58 offen lds")
        a(f"L_wd_{tag}_{blk}:")
    a(f"""
    s_add_u32 s57, s45, {base + 36864}
    v_add_u32 v1, 36864, v21
    v_add_u32 v2, 36864, v22
    s_mov_b32 m0, s57
    s_nop 0
    buffer_load_dwordx4 v1, s[{sr}:{sr+3}], 0 offen lds
    s_cmp_ge_u32 s33, 1
    s_cbranch_scc1 L_wd_{tag}_t
    s_add_u32 m0, s57, 4096
    s_nop 0
    buffer_load_dwordx4 v2, s[{sr}:{sr+3}], 0 offen lds
    L_wd_{tag}_t:
    """)

def flag_base(a, sreg):
    a(f"s_mul_i32 s{sreg}, s28, 640\ns_add_u32 s{sreg}, s{sreg}, {FL_WS}")

def flags_reset(a):
    a("s_cmp_lg_u32 s32, 0\ns_cbranch_scc1 L_noreset")
    flag_base(a, 39)
    a(f"""
    s_lshl_b32 s40, s29, 7
    s_add_u32 s39, s39, s40
    v_lshl_add_u32 v1, v0, 2, s39
    v_mov_b32 v2, {BIG}
    v_cmp_gt_u32 vcc, 32, v0
    v_mov_b32 v3, 0
    s_nop 0
    v_cndmask_b32 v1, v2, v1, vcc
    buffer_store_dword v3, v1, s[20:23], 0 offen sc1
    L_noreset:
    """)

def reset_count(a):
    a(f"""
    s_cmp_lg_u32 s32, 0
    s_cbranch_scc1 L_nocount
    v_cmp_eq_u32 vcc, 0, v0
    v_mov_b32 v18, s28
    v_lshlrev_b32 v18, 2, v18
    v_mov_b32 v19, {BIG}
    v_cndmask_b32 v18, v19, v18, vcc
    v_mov_b32 v19, 1
    buffer_atomic_add v19, v18, s[76:79], 0 offen sc0 sc1
    L_nocount:
    """)

def ready_bcast(a):
    a("s_cmp_lg_u32 s32, 0\ns_cbranch_scc1 L_nobc\ns_waitcnt vmcnt(0)\nv_readfirstlane_b32 s39, v19\ns_mul_i32 s40, s39, 52429\ns_lshr_b32 s40, s40, 18\ns_mul_i32 s40, s40, 5\ns_sub_u32 s39, s39, s40\ns_cmp_lg_u32 s39, 4\ns_cbranch_scc1 L_nobc")
    flag_base(a, 39)
    a(f"""
    s_add_u32 s39, s39, 84
    v_lshl_add_u32 v18, v0, 7, s39
    v_mov_b32 v19, {BIG}
    v_cmp_gt_u32 vcc, 5, v0
    v_mov_b32 v20, 1
    s_nop 0
    v_cndmask_b32 v18, v19, v18, vcc
    buffer_store_dword v20, v18, s[20:23], 0 offen sc1
    L_nobc:
    """)

def ready_load(a):
    flag_base(a, 39)
    a("s_lshl_b32 s40, s29, 7\ns_add_u32 s39, s39, s40\ns_add_u32 s39, s39, 84\nv_mov_b32 v20, s39\nbuffer_load_dword v21, v20, s[20:23], 0 offen sc1")

def ready_wait(a):
    a(f"""
    s_mov_b32 s40, 0
    L_rdy:
    s_waitcnt vmcnt(0)
    v_cmp_ne_u32 vcc, 1, v21
    s_add_u32 s40, s40, 1
    s_nop 0
    s_cmp_eq_u64 vcc, 0
    s_cbranch_scc1 L_rdy_done
    s_cmp_ge_u32 s40, {SPIN}
    s_cbranch_scc1 L_rdy_done
    buffer_load_dword v21, v20, s[20:23], 0 offen sc1
    s_branch L_rdy
    L_rdy_done:
    """)

def ge_check_load(a):
    a("s_add_u32 s39, s30, 50\ns_lshl_b32 s39, s39, 2\nv_mov_b32 v26, s39\ns_cmp_lg_u32 s32, 7\ns_cbranch_scc1 L_nogc\nbuffer_load_dword v27, v26, s[76:79], 0 offen sc1\nL_nogc:")

def ge_check_wait(a):
    a(f"""
    s_cmp_lg_u32 s32, 7
    s_cbranch_scc1 L_gc_done
    s_mov_b32 s40, 0
    L_gc:
    s_waitcnt vmcnt(0)
    v_cmp_gt_u32 vcc, 1, v27
    s_add_u32 s40, s40, 1
    s_nop 0
    s_cmp_eq_u64 vcc, 0
    s_cbranch_scc1 L_gc_done
    s_cmp_ge_u32 s40, {SPIN}
    s_cbranch_scc1 L_gc_done
    buffer_load_dword v27, v26, s[76:79], 0 offen sc1
    s_branch L_gc
    L_gc_done:
    """)

def flags_set(a):
    flag_base(a, 39)
    a(f"""
    s_lshl_b32 s40, s29, 4
    s_add_u32 s39, s39, s40
    s_lshl_b32 s40, s32, 2
    s_add_u32 s39, s39, s40
    v_lshl_add_u32 v1, v0, 7, s39
    v_mov_b32 v2, {BIG}
    v_cmp_gt_u32 vcc, 5, v0
    v_mov_b32 v3, 1
    s_nop 0
    v_cndmask_b32 v1, v2, v1, vcc
    """)
    ready_wait(a)
    a("buffer_store_dword v3, v1, s[20:23], 0 offen sc1")

def ge_flags(a):
    a(f"""
    s_waitcnt vmcnt(0)
    s_barrier
    s_cmp_lg_u32 s32, 0
    s_cbranch_scc1 L_k1_end
    s_add_u32 s39, s30, 50
    s_lshl_b32 s39, s39, 2
    v_mov_b32 v1, s39
    v_mov_b32 v2, {BIG}
    v_cmp_eq_u32 vcc, 0, v0
    v_mov_b32 v3, 1
    s_nop 0
    v_cndmask_b32 v1, v2, v1, vcc
    buffer_atomic_add v3, v1, s[76:79], 0 offen sc1
    """)

def k1_compute(a, store_flags="", fused=False):
    ACC = 32; BUF = [64, 84]
    a("s_mov_b32 s33, s32"); x_load(a)
    if fused: flags_reset(a)
    a(f"""
    s_and_b32 s33, s32, 1
    s_lshr_b32 s34, s32, 1
    v_and_b32 v1, 15, v0
    v_lshrrev_b32 v2, 4, v0
    ; vA0 = (8g + j/4)*64 + (g&1)*32 + 8*(j%4) + 2048*kh, xor 32*kh for own-tile-first order
    v_lshrrev_b32 v3, 2, v1
    v_lshl_add_u32 v3, v2, 3, v3
    v_lshlrev_b32 v3, 6, v3
    v_and_b32 v4, 1, v2
    v_lshl_add_u32 v3, v4, 5, v3
    v_and_b32 v4, 3, v1
    v_lshl_add_u32 v3, v4, 3, v3
    s_lshl_b32 s35, s33, 5
    v_xor_b32 v3, s35, v3
    s_lshl_b32 s35, s33, 11
    v_add_u32 v4, s35, v3
    v_xor_b32 v5, 32, v4
    s_mul_i32 s35, s34, 48
    v_add_u32 v6, s35, v1
    v_mul_u32_u24 v7, 608, v6
    v_lshl_add_u32 v7, v2, 4, v7
    s_mov_b32 s36, {RING}
    s_mov_b32 s37, s33
    s_mov_b32 s38, 0
    """)
    for i in range(24): a(f"v_mov_b32 v{ACC+i}, 0")
    def reads(m, buf):
        A = BUF[buf]; B = A + 8
        a(f"s_add_u32 s39, s37, {2*m}\ns_mul_i32 s40, s39, 57\ns_lshr_b32 s40, s40, 9\ns_lshl_b32 s40, s40, 5\ns_lshl_b32 s39, s39, 6\ns_add_u32 s39, s39, s40")
        a(f"v_add_u32 v10, s39, v7")
        for ct, va in ((0, 8), (1, 9)):
            for p in range(2): a(f"ds_read_b64_tr_b16 {vr(A+4*ct+2*p,2)}, v{va} offset:{4096*m+256*p}")
        for tt in range(3): a(f"ds_read_b128 {vr(B+4*tt)}, v10 offset:{9728*tt}")
    def mfmas(buf):
        A = BUF[buf]; B = A + 8
        for tt in range(3):
            for ct in range(2):
                c = ACC + 12*ct + 4*tt
                a(f"v_mfma_f32_16x16x32_bf16 {vr(c)}, {vr(A+4*ct)}, {vr(B+4*tt)}, {vr(c)}")
    def chunk(tail):
        a("s_barrier\nv_add_u32 v8, s36, v4\nv_add_u32 v9, s36, v5")
        if gp.PROF and not tail: a("s_cmp_lg_u32 s38, 0\ns_cbranch_scc1 L_not1\ns_memrealtime s[82:83]\nL_not1:")
        if 'noc1' in EXP:
            a("s_add_u32 s37, s37, 8"); slot_next(a, 36); return
        reads(0, 0); reads(1, 1)
        a("s_waitcnt lgkmcnt(7)"); mfmas(0)
        if not tail:
            reads(2, 0); a("s_waitcnt lgkmcnt(7)"); mfmas(1)
            reads(3, 1); a("s_waitcnt lgkmcnt(7)"); mfmas(0)
        a("s_waitcnt lgkmcnt(0)"); mfmas(1)
        a("s_add_u32 s37, s37, 8"); slot_next(a, 36)
    gp.T(a, 0)
    a("s_waitcnt vmcnt(0)")
    if fused: reset_count(a)
    a("L_c1:"); chunk(False)
    a("s_add_u32 s38, s38, 1\ns_cmp_lt_u32 s38, 8\ns_cbranch_scc1 L_c1")
    gp.T(a, 2)
    chunk(True)
    gp.T(a, 3)
    a(f"""
    s_barrier
    s_mul_i32 s39, s32, 3072
    v_lshlrev_b32 v11, 4, v0
    v_add_u32 v12, s39, v11
    s_xor_b32 s39, s32, 1
    s_mul_i32 s39, s39, 3072
    v_add_u32 v13, s39, v11
    s_nop 3
    """)
    for tt in range(3): a(f"ds_write_b128 v12, {vr(ACC+12+4*tt)} offset:{1024*tt}")
    a("s_waitcnt lgkmcnt(0)\ns_barrier")
    for tt in range(3): a(f"ds_read_b128 {vr(64+4*tt)}, v13 offset:{1024*tt}")
    a(f"""
    v_mul_u32_u24 v14, 80, v6
    v_lshl_add_u32 v14, v2, 3, v14
    s_lshl_b32 s39, s33, 5
    s_add_u32 s39, s39, {H_OFF}
    v_add_u32 v14, s39, v14
    s_mul_i32 s39, s31, 80
    s_sub_u32 s39, s39, 7
    v_add_u32 v15, s39, v6
    s_mov_b32 s40, {GC1}
    v_mov_b32 v16, {GC2}
    s_movk_i32 s41, 2000
    s_waitcnt lgkmcnt(0)
    """)
    for i in range(12): a(f"v_add_f32 v{ACC+i}, v{ACC+i}, v{64+i}")
    gelu(a, [ACC+i for i in range(12)], [64+i for i in range(12)], None, 40, 16)
    for tt in range(3):
        a(f"v_add_u32 v17, {16*tt}, v15\nv_cmp_gt_u32 vcc, s41, v17")
        a(f"v_cvt_pk_bf16_f32 v64, v{ACC+4*tt}, v{ACC+4*tt+1}\nv_cvt_pk_bf16_f32 v65, v{ACC+4*tt+2}, v{ACC+4*tt+3}")
        a(f"v_cndmask_b32 v{66+2*tt}, 0, v64, vcc\nv_cndmask_b32 v{67+2*tt}, 0, v65, vcc")
        a(f"ds_write_b64 v14, {vr(66+2*tt,2)} offset:{1280*tt}")
    ACC2 = 32
    a144_addr(a, 4, 0, 10, 11)
    a(f"""
    s_lshl_b32 s39, s32, 6
    v_add_u32 v5, 256, v4
    v_add_u32 v4, s39, v4
    v_mul_u32_u24 v6, 160, v1
    v_lshl_add_u32 v6, v2, 4, v6
    v_add_u32 v6, {H_OFF}, v6
    s_min_u32 s39, s32, 2
    s_mul_i32 s39, s39, 2560
    v_add_u32 v7, s39, v6
    s_mov_b32 s38, 0
    """)
    for i in range(28): a(f"v_mov_b32 v{ACC2+i}, 0")
    a("s_waitcnt lgkmcnt(0)")
    AB = [64, 92]
    def reads2(tap, buf):
        A = AB[buf]; B = A + 12; l = []
        for d in range(2):
            for p in range(2): l.append(f"ds_read_b64_tr_b16 {vr(A+4*d+2*p,2)}, v8 offset:{9216*tap+32*d+2304*p}")
        for tt in range(3): l.append(f"ds_read_b128 {vr(B+4*tt)}, v10 offset:{2560*tt+80*tap}")
        for p in range(2): l.append(f"ds_read_b64_tr_b16 {vr(A+8+2*p,2)}, v9 offset:{9216*tap+2304*p}")
        l.append(f"ds_read_b128 {vr(B+12)}, v11 offset:{80*tap}")
        return l
    def mf2(buf):
        A = AB[buf]; B = A + 12; l = []
        for tt in range(3):
            for d in range(2):
                c = ACC2 + 4*(3*d+tt); l.append(f"v_mfma_f32_16x16x32_bf16 {vr(c)}, {vr(A+4*d)}, {vr(B+4*tt)}, {vr(c)}")
        c = ACC2 + 24; l.append(f"v_mfma_f32_16x16x32_bf16 {vr(c)}, {vr(A+8)}, {vr(B+12)}, {vr(c)}")
        return l
    def chunk2(tail):
        a("s_barrier\nv_add_u32 v8, s36, v4\nv_add_u32 v9, s36, v5\nv_mov_b32 v10, v6\nv_mov_b32 v11, v7")
        if 'noc2' in EXP:
            if not tail: slot_next(a, 36)
            return
        r0 = reads2(0, 0)
        for x in r0: a(x)
        if tail:
            a("s_waitcnt lgkmcnt(0)")
            for x in mf2(0): a(x)
        else:
            r1 = reads2(1, 1)
            for x in r1[:5]: a(x)
            a("s_waitcnt lgkmcnt(5)")
            m0 = mf2(0); a(m0[0])
            for x in r1[5:]: a(x)
            for x in m0[1:]: a(x)
            a("s_waitcnt lgkmcnt(0)")
            for x in mf2(1): a(x)
            a("v_add_u32 v6, 160, v6\nv_add_u32 v7, 160, v7"); slot_next(a, 36)
    gp.T(a, 4)
    if fused: ready_load(a)
    a("L_c2:"); chunk2(False)
    a("s_add_u32 s38, s38, 1\ns_cmp_lt_u32 s38, 7\ns_cbranch_scc1 L_c2")
    gp.T(a, 5)
    if fused: ready_wait(a)
    chunk2(True)
    gp.T(a, 6)
    a(f"""
    v_lshrrev_b32 v3, 3, v1
    v_mul_u32_u24 v3, 11520, v3
    v_lshl_add_u32 v3, v2, 6, v3
    v_and_b32 v4, 7, v1
    v_lshl_add_u32 v3, v4, 3, v3
    s_mul_i32 s39, s28, 57600
    s_mul_i32 s40, s29, 2304
    s_add_u32 s39, s39, s40
    s_add_u32 s39, s39, {P_WS}
    v_add_u32 v3, s39, v3
    s_lshl_b32 s40, s32, 9
    v_add_u32 v4, s40, v3
    v_mov_b32 v9, {BIG}
    v_cmp_gt_u32 vcc, 8, v1
    s_min_u32 s41, s32, 2
    s_mul_i32 s41, s41, 23040
    v_cndmask_b32 v5, v9, v4, vcc
    s_add_u32 s41, s41, 2048
    v_add_u32 v6, s41, v3
    v_cndmask_b32 v7, v9, v6, vcc
    s_cmp_eq_u32 s32, 2
    s_cselect_b64 vcc, -1, 0
    v_cndmask_b32 v6, v6, v7, vcc
    s_cmp_eq_u32 s32, 3
    s_cselect_b64 vcc, -1, 0
    v_cndmask_b32 v6, v6, v9, vcc
    s_movk_i32 s42, 23040
    s_mov_b32 s43, 46080
    """)
    for t in range(7):
        c = ACC2 + 4*t
        a(f"v_cvt_pk_bf16_f32 v{64+2*t}, v{c}, v{c+1}\nv_cvt_pk_bf16_f32 v{65+2*t}, v{c+2}, v{c+3}")
    for d in range(2):
        for tt in range(3):
            t = 3*d + tt
            va, so = [(4, "0"), (4, "s42"), (5, "s43")][tt]
            a(f"buffer_store_dwordx2 {vr(64+2*t,2)}, v{va}, s[20:23], {so} offen offset:{256*d}{store_flags}")
    a(f"buffer_store_dwordx2 {vr(76,2)}, v6, s[20:23], 0 offen{store_flags}")

def k1_ge(a, store_flags="", fused=False):
    a("L_ge:\ns_sub_u32 s30, s2, 250\ns_waitcnt lgkmcnt(0)\ns_load_dwordx2 s[4:5], s[0:1], 24\ns_load_dwordx2 s[6:7], s[0:1], 40\ns_mul_i32 s37, s30, 2304\ns_waitcnt lgkmcnt(0)")
    srd(a, 8, 4, 2304, add="s37"); srd(a, 12, 6, 41472); srd(a, 20, 26, 0x1000000)
    if fused: srd(a, 76, 46, 256)
    dma_w144(a, "wg", 12, WF_OFF, 8, 32, 0, [1, 2, 3, 4, 5])
    a(f"""
    v_lshlrev_b32 v1, 4, v0
    s_lshl_b32 s39, s32, 10
    v_add_u32 v1, s39, v1
    s_add_u32 m0, s39, {F_OFF}
    s_cmp_ge_u32 s32, 3
    s_cbranch_scc1 L_ge_skip
    buffer_load_dwordx4 v1, s[8:11], 0 offen lds
    L_ge_skip:
    s_waitcnt vmcnt(0)
    s_barrier
    """)
    a144_addr(a, 4, 0, 10, 11); a144_tail_addr(a, 5, 0, 10, 11)
    a(f"""
    v_and_b32 v1, 15, v0
    v_lshrrev_b32 v2, 4, v0
    v_mul_u32_u24 v6, 288, v1
    v_add_u32 v6, {F_OFF}, v6
    v_lshl_add_u32 v7, v2, 3, v6
    v_add_u32 v7, 256, v7
    v_lshl_add_u32 v6, v2, 4, v6
    s_lshl_b32 s39, s32, 5
    s_add_u32 s39, s39, {WF_OFF}
    v_add_u32 v4, s39, v4
    v_add_u32 v5, s39, v5
    v_mul_u32_u24 v8, 576, v1
    v_lshl_add_u32 v8, v2, 4, v8
    s_mul_i32 s40, s30, 4608
    s_add_u32 s40, s40, {GE_WS}
    s_lshl_b32 s41, s32, 6
    s_add_u32 s40, s40, s41
    v_add_u32 v8, s40, v8
    v_mov_b32 v9, {BIG}
    v_cmp_gt_u32 vcc, 8, v1
    s_mov_b32 s44, {TS}
    """)
    a("v_cndmask_b32 v8, v9, v8, vcc")
    load_rows_B(a, 64, 6, 7)
    for rep in range(2):
        if rep == 1: a("s_cmp_lg_u32 s32, 0\ns_cbranch_scc1 L_ge_done")
        proj_tile(a, 32, 84, 64, 4, 5, 256*rep)
        a("s_nop 7")
        for i in range(4): a(f"v_mul_f32 v{36+i}, s44, v{32+i}")
        a(f"buffer_store_dwordx4 {vr(36)}, v8, s[20:23], 0 offen offset:{512*rep}{store_flags}\ns_nop 1")
    a("L_ge_done:")
    if fused:
        ge_flags(a)

def k1_compute_end(a):
    if gp.PROF:
        a("s_waitcnt vmcnt(0)"); gp.T(a, 7); a("s_cmp_lg_u32 s32, 0\ns_cbranch_scc1 L_nodump1"); gp.Tdump(a, 0, 8); a("L_nodump1:")
```

```python
from gen_k1 import *

def loader(a):
    a(f"""
    L_loader:
    s_sub_u32 s33, s32, 4
    v_mov_b32 v9, {BIG}
    v_lshrrev_b32 v2, 2, v0
    v_mul_u32_u24 v2, 288, v2
    v_lshrrev_b32 v3, 4, v0
    v_and_b32 v3, 2, v3
    v_and_b32 v4, 3, v0
    v_xor_b32 v3, v3, v4
    v_lshl_add_u32 v2, v3, 4, v2
    s_lshl_b32 s41, s29, 6
    v_add_u32 v10, s41, v2
    s_cmp_eq_u32 s29, 4
    s_cselect_b32 s41, 1, 100
    v_cmp_lt_u32 vcc, s41, v3
    s_mul_i32 s55, s33, 4608
    s_lshl_b32 s45, s33, 10
    s_mov_b32 s54, {RING}
    v_cndmask_b32 v10, v10, v9, vcc
    """)
    def w1_chunk(tag, tail=False):
        for e in range(3 if tail else 5):
            v = 10
            if (not tail and e == 4) or (tail and e == 2): a(f"s_cmp_ge_u32 s33, 2\ns_cbranch_scc1 L_w1skip_{tag}")
            a(f"s_add_u32 s57, s54, s45\ns_add_u32 m0, s57, {4096*e}\ns_add_u32 s58, s55, {18432*e}")
            if tail and e == 2:
                a(f"s_cmp_eq_u32 s33, 1\ns_cselect_b32 s59, {BIG}, 0\nv_or_b32 v16, s59, v10"); v = 16
            a(f"buffer_load_dwordx4 v{v}, s[12:15], s58 offen lds")
        a(f"L_w1skip_{tag}:\ns_add_u32 s55, s55, 82944"); slot_next(a, 54)
    a("s_mov_b32 s60, 0\nL_ld0:"); w1_chunk("p")
    a("s_add_u32 s60, s60, 1\ns_cmp_lt_u32 s60, 4\ns_cbranch_scc1 L_ld0")
    for e in range(5):
        a(f"""
        s_add_u32 s52, s33, {4*e}
        s_cmp_ge_u32 s52, 9
        s_cselect_b32 s53, 9, 0
        s_cselect_b32 s{46+e}, 41472, 0
        s_sub_u32 s52, s52, s53
        s_lshl_b32 s52, s52, 6
        v_add_u32 v1, s52, v0
        v_mul_u32_u24 v2, 3641, v1
        v_lshrrev_b32 v2, 16, v2
        v_mul_u32_u24 v3, 18, v2
        v_sub_u32 v3, v1, v3
        v_and_b32 v4, 4, v2
        v_lshlrev_b32 v4, 1, v4
        v_and_b32 v5, 8, v2
        v_lshrrev_b32 v5, 1, v5
        v_or_b32 v4, v4, v5
        v_and_b32 v5, 0x13, v2
        v_or_b32 v4, v4, v5
        v_mul_u32_u24 v{21+e}, 288, v4
        v_lshl_add_u32 v{21+e}, v3, 4, v{21+e}
        s_cmp_eq_u32 s29, 4
        s_cselect_b32 s53, 15, 100
        v_cmp_lt_u32 vcc, s53, v4
        s_mul_i32 s53, s29, 9216
        v_add_u32 v4, s53, v{21+e}
        v_cndmask_b32 v{11+e}, v4, v9, vcc
        """)
    a("s_mov_b32 s56, 0\ns_cmp_ge_u32 s33, 1\ns_cselect_b32 s61, 9216, 0")
    def w2_chunk(tag, tail=False):
        for e in range(3 if tail else 5):
            if (not tail and e == 4): a(f"s_cmp_ge_u32 s33, 2\ns_cbranch_scc1 L_w2skip_{tag}")
            if (tail and e == 2): a(f"s_cmp_ge_u32 s33, 1\ns_cbranch_scc1 L_w2skip_{tag}")
            a(f"s_add_u32 s57, s54, s45\ns_add_u32 m0, s57, {4096*e}\ns_add_u32 s58, s56, s{46+e}")
            a(f"buffer_load_dwordx4 v{11+e}, s[16:19], s58 offen lds")
        a(f"L_w2skip_{tag}:\ns_add_u32 s56, s56, 82944"); slot_next(a, 54)
    cnt = [4]*7 + [2] + [4]*7 + [2]
    def allowed(n): return sum(cnt[c] for c in range(n+1, min(n+4, 16)))
    a("s_mov_b32 s60, 0\nL_ld1:")
    a(f"s_waitcnt vmcnt({min(allowed(n) for n in range(0,3))})\ns_barrier"); w1_chunk("l1")
    a("s_add_u32 s60, s60, 1\ns_cmp_lt_u32 s60, 3\ns_cbranch_scc1 L_ld1")
    a(f"s_waitcnt vmcnt({allowed(3)})\ns_barrier"); w1_chunk("t", True)
    a("s_mov_b32 s60, 0\nL_ld2:")
    a(f"s_waitcnt vmcnt({min(allowed(n) for n in range(4,11))})\ns_barrier"); w2_chunk("l2")
    a("s_add_u32 s60, s60, 1\ns_cmp_lt_u32 s60, 7\ns_cbranch_scc1 L_ld2")
    a(f"s_waitcnt vmcnt({allowed(11)})\ns_barrier"); w2_chunk("t", True)
    w_dma(a, 64, WF_OFF, "wf")
    a("s_waitcnt vmcnt(19)\ns_barrier\ns_waitcnt vmcnt(15)\ns_barrier\ns_waitcnt vmcnt(11)\ns_barrier")
    w_dma(a, 68, WO_OFF, "wo")
    ge_check_load(a)
    a("s_waitcnt vmcnt(18)\ns_barrier")
    ge_check_wait(a)

def compute(a, store_flags):
    ACC, A1, B1 = 32, 44, 80
    a("s_mov_b32 s33, s32"); x_load(a); flags_reset(a)
    a(f"""
    s_and_b32 s33, s32, 1
    s_lshr_b32 s34, s32, 1
    v_and_b32 v1, 15, v0
    v_lshrrev_b32 v2, 4, v0
    v_lshrrev_b32 v3, 2, v1
    v_lshl_add_u32 v3, v2, 3, v3
    v_lshlrev_b32 v3, 6, v3
    v_and_b32 v4, 1, v2
    v_lshl_add_u32 v3, v4, 5, v3
    v_and_b32 v4, 3, v1
    v_lshl_add_u32 v3, v4, 3, v3
    s_lshl_b32 s35, s33, 5
    v_xor_b32 v4, s35, v3
    s_mul_i32 s35, s34, 48
    v_add_u32 v6, s35, v1
    v_mul_u32_u24 v7, 608, v6
    v_lshl_add_u32 v7, v2, 4, v7
    s_mov_b32 s36, {RING}
    s_mov_b32 s38, 0
    """)
    for i in range(12): a(f"v_mov_b32 v{ACC+i}, 0")
    gp.T(a, 0)
    a("s_waitcnt vmcnt(0)"); reset_count(a)
    def Brd(m, tt): return f"ds_read_b128 {vr(B1+12*m+4*tt)}, v7 offset:{64*m + 9728*tt}"
    def Ard(m, p): return f"ds_read_b64_tr_b16 {vr(A1+4*m+2*p,2)}, v8 offset:{2048*m + 256*p}"
    def mf(m, tt): return f"v_mfma_f32_16x16x32_bf16 {vr(ACC+4*tt)}, {vr(A1+4*m)}, {vr(B1+12*m+4*tt)}, {vr(ACC+4*tt)}"
    def chunk(nk, prefetch):
        q = LQ(a)
        a("v_add_u32 v8, s36, v4")
        if prefetch: a("v_add_u32 v7, 608, v7")
        for m in range(3):
            for p in range(2): a(q.rd(f"A{m}", Ard(m, p)))
        slot_next(a, 36)
        for m in range(nk):
            a(q.wait(f"A{m}"))
            a(mf(m, 0))
            if m + 3 < nk:
                for p in range(2): a(q.rd(f"A{m+3}", Ard(m+3, p)))
            a(mf(m, 1))
            if prefetch: a(q.rd("B", Brd(m, 0)))
            a(mf(m, 2))
            if prefetch: a(q.rd("B", Brd(m, 1))); a(q.rd("B", Brd(m, 2)))
    a("s_barrier")
    for m in range(9):
        for tt in range(3): a(Brd(m, tt))
    a("s_branch L_c1b\nL_c1:\ns_barrier\nL_c1b:")
    if gp.PROF: a("s_cmp_lg_u32 s38, 0\ns_cbranch_scc1 L_not1\ns_memrealtime s[82:83]\nL_not1:")
    chunk(9, True)
    a("s_add_u32 s38, s38, 1\ns_cmp_lt_u32 s38, 7\ns_cbranch_scc1 L_c1")
    gp.T(a, 2)
    a("s_barrier"); chunk(5, False)
    ready_bcast(a)
    a(f"""
    v_mul_u32_u24 v14, 80, v6
    v_lshl_add_u32 v14, v2, 3, v14
    s_lshl_b32 s39, s33, 5
    s_add_u32 s39, s39, {H_OFF}
    v_add_u32 v14, s39, v14
    s_mul_i32 s39, s31, 80
    s_sub_u32 s39, s39, 7
    v_add_u32 v15, s39, v6
    s_mov_b32 s40, {GC1}
    s_mov_b32 s41, {GC1}
    v_mov_b32 v16, {GC2}
    v_mov_b32 v17, {GC2}
    s_movk_i32 s42, 2000
    """)
    a144_addr(a, 4, 0, 10, 11)
    gelu_pk(a, [ACC+i for i in range(12)], 64, (40, 16))
    for tt in range(3):
        a(f"v_add_u32 v18, {16*tt}, v15\nv_cmp_gt_u32 vcc, s42, v18")
        a(f"v_cvt_pk_bf16_f32 v64, v{ACC+4*tt}, v{ACC+4*tt+1}\nv_cvt_pk_bf16_f32 v65, v{ACC+4*tt+2}, v{ACC+4*tt+3}")
        a(f"v_cndmask_b32 v{66+2*tt}, 0, v64, vcc\nv_cndmask_b32 v{67+2*tt}, 0, v65, vcc")
        a(f"ds_write_b64 v14, {vr(66+2*tt,2)} offset:{1280*tt}")
    ACC2, A2, B2 = 32, 64, 92
    a(f"""
    s_lshl_b32 s39, s32, 6
    v_add_u32 v5, 256, v4
    v_add_u32 v4, s39, v4
    v_mul_u32_u24 v6, 160, v1
    v_lshl_add_u32 v6, v2, 4, v6
    v_add_u32 v6, {H_OFF}, v6
    s_min_u32 s39, s32, 2
    s_mul_i32 s39, s39, 2560
    v_add_u32 v7, s39, v6
    s_mov_b32 s38, 0
    """)
    for i in range(28): a(f"v_mov_b32 v{ACC2+i}, 0")
    a("s_waitcnt lgkmcnt(0)")
    gp.T(a, 4)
    def A2rd(tap, i):
        A = A2 + 12*tap
        if i < 4: return f"ds_read_b64_tr_b16 {vr(A+4*(i//2)+2*(i%2),2)}, v8 offset:{9216*tap+32*(i//2)+2304*(i%2)}"
        return f"ds_read_b64_tr_b16 {vr(A+8+2*(i-4),2)}, v9 offset:{9216*tap+2304*(i-4)}"
    def B2rd(tap, i):
        B = B2 + 16*tap
        if i < 3: return f"ds_read_b128 {vr(B+4*i)}, v6 offset:{2560*i+80*tap}"
        return f"ds_read_b128 {vr(B+12)}, v7 offset:{80*tap}"
    def mf2(tap):
        A = A2 + 12*tap; B = B2 + 16*tap; l = []
        for tt in range(3):
            for d in range(2):
                c = ACC2 + 4*(3*d+tt); l.append(f"v_mfma_f32_16x16x32_bf16 {vr(c)}, {vr(A+4*d)}, {vr(B+4*tt)}, {vr(c)}")
        c = ACC2 + 24; l.append(f"v_mfma_f32_16x16x32_bf16 {vr(c)}, {vr(A+8)}, {vr(B+12)}, {vr(c)}")
        return l
    def chunk2(ntap, prefetch):
        q = LQ(a)
        a("v_add_u32 v8, s36, v4\nv_add_u32 v9, s36, v5")
        if prefetch: a("v_add_u32 v6, 160, v6\nv_add_u32 v7, 160, v7")
        for i in range(6): a(q.rd("A0", A2rd(0, i)))
        if ntap == 2:
            for i in range(3): a(q.rd("A1", A2rd(1, i)))
        a(q.wait("A0"))
        for tap in range(ntap):
            if tap == 1: a(q.wait("A1"))
            m = mf2(tap)
            for k in range(7):
                a(m[k])
                if tap == 0 and ntap == 2 and k < 3: a(q.rd("A1", A2rd(1, 3+k)))
                if prefetch and k in (1, 3, 5, 6): a(q.rd("B", B2rd(tap, [1, 3, 5, 6].index(k))))
        if prefetch: slot_next(a, 36)
    a("s_barrier")
    for tap in range(2):
        for i in range(4): a(B2rd(tap, i))
    a("s_branch L_c2b\nL_c2:\ns_barrier\nL_c2b:")
    chunk2(2, True)
    a("s_add_u32 s38, s38, 1\ns_cmp_lt_u32 s38, 7\ns_cbranch_scc1 L_c2")
    ready_load(a)
    a("s_barrier"); chunk2(1, False)
    gp.T(a, 6)
    a(f"""
    v_lshrrev_b32 v3, 3, v1
    v_mul_u32_u24 v3, 11520, v3
    v_lshl_add_u32 v3, v2, 6, v3
    v_and_b32 v4, 7, v1
    v_lshl_add_u32 v3, v4, 3, v3
    s_mul_i32 s39, s28, 57600
    s_mul_i32 s40, s29, 2304
    s_add_u32 s39, s39, s40
    s_add_u32 s39, s39, {P_WS}
    v_add_u32 v3, s39, v3
    s_lshl_b32 s40, s32, 9
    v_add_u32 v4, s40, v3
    v_mov_b32 v9, {BIG}
    v_cmp_gt_u32 vcc, 8, v1
    s_min_u32 s41, s32, 2
    s_mul_i32 s41, s41, 23040
    v_cndmask_b32 v5, v9, v4, vcc
    s_add_u32 s41, s41, 2048
    v_add_u32 v6, s41, v3
    v_cndmask_b32 v7, v9, v6, vcc
    s_cmp_eq_u32 s32, 2
    s_cselect_b64 vcc, -1, 0
    v_cndmask_b32 v6, v6, v7, vcc
    s_cmp_eq_u32 s32, 3
    s_cselect_b64 vcc, -1, 0
    v_cndmask_b32 v6, v6, v9, vcc
    s_movk_i32 s42, 23040
    s_mov_b32 s43, 46080
    """)
    for t in range(7):
        c = ACC2 + 4*t
        a(f"v_cvt_pk_bf16_f32 v{64+2*t}, v{c}, v{c+1}\nv_cvt_pk_bf16_f32 v{65+2*t}, v{c+2}, v{c+3}")
    for d in range(2):
        for tt in range(3):
            t = 3*d + tt
            va, so = [(4, "0"), (4, "s42"), (5, "s43")][tt]
            a(f"buffer_store_dwordx2 {vr(64+2*t,2)}, v{va}, s[20:23], {so} offen offset:{256*d}{store_flags}")
    a(f"buffer_store_dwordx2 {vr(76,2)}, v6, s[20:23], 0 offen{store_flags}")
```

```python
from gen_parts import *
import os
import gen_parts as gp

def k2_prologue(a):
    a(f"""
    s_cmp_ge_u32 s2, 250
    s_cbranch_scc1 L_k2_end
    s_load_dwordx2 s[4:5], s[0:1], 32
    s_load_dwordx4 s[24:27], s[0:1], 48
    s_load_dwordx2 s[6:7], s[0:1], 72
    v_lshrrev_b32 v1, 6, v0
    v_and_b32 v0, 63, v0
    v_readfirstlane_b32 s32, v1
    """)
    wgmap(a, "k2")
    a("s_waitcnt lgkmcnt(0)")
    srd(a, 8, 4, 41472); srd(a, 12, 24, 41472); srd(a, 16, 26, 4608000); srd(a, 20, 6, 0x1000000)

def k2_ge_loads(a, sc=""):
    a(f"""
    v_and_b32 v3, 7, v0
    v_mul_u32_u24 v3, 576, v3
    v_lshrrev_b32 v4, 4, v0
    s_mul_i32 s39, s30, 4608
    s_add_u32 s39, s39, {GE_WS}
    v_add_u32 v3, s39, v3
    v_lshl_add_u32 v5, v4, 4, v3
    v_lshl_add_u32 v3, v4, 5, v3
    """)
    for c in range(4):
        for h in range(2): a(f"buffer_load_dwordx4 {vr(16+8*c+4*h)}, v3, s[20:23], 0 offen offset:{128*c+16*h}{sc}")
    a(f"buffer_load_dwordx4 {vr(48)}, v5, s[20:23], 0 offen offset:512{sc}")

def k2_partial_loads(a, sc=""):
    a(f"""
    s_lshl_b32 s39, s32, 6
    v_add_u32 v6, s39, v0
    s_mul_i32 s40, s28, 5
    s_add_u32 s40, s40, s29
    s_mul_i32 s40, s40, 11520
    s_add_u32 s40, s40, {P_WS}
    v_lshl_add_u32 v7, v6, 3, s40
    v_mov_b32 v9, {BIG}
    s_movk_i32 s41, 288
    v_cmp_gt_u32 vcc, s41, v6
    s_movk_i32 s42, 4608
    s_movk_i32 s43, 9216
    v_cndmask_b32 v7, v9, v7, vcc
    """)
    for s_, (so, off) in enumerate([("0", 0), ("0", 2304), ("s42", 0), ("s42", 2304), ("s43", 0)]):
        a(f"buffer_load_dwordx2 {vr(52+2*s_,2)}, v7, s[20:23], {so} offen offset:{off}{sc}")

def k2_partial_sum(a):
    X = [64, 65, 66, 67]; T = [68, 69, 70, 71]
    a(f"""
    v_lshrrev_b32 v10, 5, v6
    v_lshlrev_b32 v10, 5, v10
    v_bfe_u32 v11, v6, 3, 2
    v_lshl_add_u32 v10, v11, 3, v10
    v_and_b32 v11, 7, v6
    v_mul_u32_u24 v11, 288, v11
    v_add_u32 v10, v10, v11
    v_add_u32 v10, {F_OFF}, v10
    v_mov_b32 v11, {F_OFF + 15*288}
    v_cndmask_b32 v10, v11, v10, vcc
    s_mov_b32 s40, {GC1}
    v_mov_b32 v12, {GC2}
    v_mov_b32 v13, 0xffff0000
    """)
    return X, T

def k2_partial_math(a, X, T):
    for s_ in range(5):
        r = 52 + 2*s_
        d = X if s_ == 0 else T
        a(f"v_lshlrev_b32 v{d[0]}, 16, v{r}\nv_and_b32 v{d[1]}, v13, v{r}\nv_lshlrev_b32 v{d[2]}, 16, v{r+1}\nv_and_b32 v{d[3]}, v13, v{r+1}")
        if s_ > 0:
            a(f"v_pk_add_f32 {vr(X[0],2)}, {vr(X[0],2)}, {vr(T[0],2)}\nv_pk_add_f32 {vr(X[2],2)}, {vr(X[2],2)}, {vr(T[2],2)}")
    gelu(a, X, T, None, 40, 12)
    a(f"v_cvt_pk_bf16_f32 v72, v{X[0]}, v{X[1]}\nv_cvt_pk_bf16_f32 v73, v{X[2]}, v{X[3]}\nds_write_b64 v10, v[72:73]")

def k2_fe(a):
    a144_addr(a, 4, 0, 10, 11); a144_tail_addr(a, 5, 0, 10, 11)
    a(f"""
    v_and_b32 v1, 15, v0
    v_lshrrev_b32 v2, 4, v0
    v_mul_u32_u24 v6, 288, v1
    v_add_u32 v6, {F_OFF}, v6
    v_lshl_add_u32 v7, v2, 3, v6
    v_add_u32 v7, 256, v7
    v_lshl_add_u32 v6, v2, 4, v6
    s_lshl_b32 s39, s32, 5
    v_add_u32 v14, s39, v4
    v_add_u32 v15, s39, v5
    v_mul_u32_u24 v8, 576, v1
    v_lshl_add_u32 v8, v2, 4, v8
    s_lshl_b32 s41, s32, 6
    s_add_u32 s41, s41, {FE_OFF}
    v_add_u32 v8, s41, v8
    s_mov_b32 s44, {TS}
    """)

def k2_fe_run(a):
    load_rows_B(a, 64, 6, 7)
    for rep in range(2):
        if rep == 1: a("s_cmp_lg_u32 s32, 7\ns_cbranch_scc1 L_fe_done")
        proj_tile(a, 84, 92, 64, 14, 15, WF_OFF + 32*rep)
        a("s_nop 7")
        for i in range(4): a(f"v_mul_f32 v{88+i}, s44, v{84+i}")
        a(f"ds_write_b128 v8, {vr(88)} offset:{64*rep}")
    a("L_fe_done:")

def interleave(main, extra, every):
    out = []; e = list(extra)
    for i, x in enumerate(main):
        out.append(x)
        if e and (i + 1) % every == 0: out.append(e.pop(0))
    return out + e

def k2_joint(a, st="", osrd=16):
    GE, ACC, AB, FE = 16, 52, [88, 124], 160
    BB = [196, 200]
    a(f"""
    v_lshrrev_b32 v6, 3, v1
    s_lshl_b32 s39, s32, 1
    v_add_u32 v6, s39, v6
    v_mul_u32_u24 v6, 576, v6
    v_add_u32 v6, {FE_OFF}, v6
    v_lshl_add_u32 v7, v2, 4, v6
    v_lshl_add_u32 v6, v2, 5, v6
    v_add_u32 v4, {WO_OFF}, v4
    v_add_u32 v5, {WO_OFF}, v5
    """)
    for c in range(4):
        for h in range(2): a(f"ds_read_b128 {vr(FE+8*c+4*h)}, v6 offset:{128*c+16*h}")
    a(f"ds_read_b128 {vr(FE+32)}, v7 offset:512")
    def areads(c):
        A = AB[c % 2]; l = []
        for vt in range(9):
            if c < 4:
                for p in range(2): l.append(f"ds_read_b64_tr_b16 {vr(A+4*vt+2*p,2)}, v4 offset:{32*vt + c*32*288 + p*2304}")
            else:
                l.append(f"ds_read_b64_tr_b16 {vr(A+4*vt,2)}, v5 offset:{32*vt}")
        return l
    def mf(c):
        A = AB[c % 2]; B = BB[c % 2]; l = []
        for vt in range(9):
            src = "0" if c == 0 else vr(ACC+4*vt)
            if c < 4: l.append(f"v_mfma_f32_16x16x32_bf16 {vr(ACC+4*vt)}, {vr(A+4*vt)}, {vr(B)}, {src}")
            else: l.append(f"v_mfma_f32_16x16x16_bf16 {vr(ACC+4*vt)}, {vr(A+4*vt,2)}, {vr(B,2)}, {src}")
        return l
    def tanh(c):
        n = 8 if c < 4 else 4
        x = [GE + 8*c + i for i in range(n)]; B = BB[c % 2]; l = []
        for i in range(n): l.append(f"v_exp_f32 v{x[i]}, v{x[i]}")
        for i in range(0, n, 2): l.append(f"v_pk_add_f32 {vr(x[i],2)}, {vr(x[i],2)}, 1.0 op_sel_hi:[1,0]")
        for i in range(n): l.append(f"v_rcp_f32 v{x[i]}, v{x[i]}")
        for i in range(0, n, 2): l.append(f"v_pk_fma_f32 {vr(x[i],2)}, {vr(x[i],2)}, s[46:47], 1.0 op_sel_hi:[1,1,0]")
        for i in range(0, n, 2): l.append(f"v_cvt_pk_bf16_f32 v{B+i//2}, v{x[i]}, v{x[i+1]}")
        return l
    a(f"""
    s_mov_b32 s46, 0xc0000000
    s_mov_b32 s47, 0xc0000000
    s_mul_i32 s39, s30, 1000
    s_mul_i32 s40, s31, 40
    s_add_u32 s39, s39, s40
    s_lshl_b32 s40, s29, 3
    s_add_u32 s39, s39, s40
    s_lshl_b32 s40, s32, 1
    s_add_u32 s39, s39, s40
    s_mul_i32 s39, s39, 2304
    v_mul_u32_u24 v8, 288, v1
    v_add_u32 v8, s39, v8
    v_lshl_add_u32 v9, v2, 3, v8
    v_and_b32 v10, 1, v2
    v_lshl_add_u32 v8, v10, 5, v8
    v_lshrrev_b32 v10, 1, v2
    v_lshl_add_u32 v8, v10, 4, v8
    s_waitcnt vmcnt(0) lgkmcnt(0)
    """)
    for i in range(0, 36, 2): a(f"v_pk_add_f32 {vr(GE+i,2)}, {vr(GE+i,2)}, {vr(FE+i,2)}")
    for x in areads(0)[:15]: a(x)
    t = tanh(0)
    for x in interleave(t[:8], areads(0)[15:], 2): a(x)
    for x in t[8:]: a(x)
    for c in range(1, 5):
        a("s_waitcnt lgkmcnt(0)")
        r = areads(c)
        for x in r[:15]: a(x)
        t = tanh(c); m = mf(c-1)
        head = interleave(t[:8] if c < 4 else t[:4], r[15:], 2)
        k = 8 if c < 4 else 4
        for x in interleave(head + t[k:], m, 3 if c < 4 else 1): a(x)
    a("s_waitcnt lgkmcnt(0)\ns_nop 1")
    for x in mf(4): a(x)
    a("s_nop 1")
    for p in range(4):
        R = 160 + 4*p
        for h in range(2):
            c = ACC + 4*(2*p+h)
            a(f"v_cvt_pk_bf16_f32 v{R+2*h}, v{c}, v{c+1}\nv_cvt_pk_bf16_f32 v{R+2*h+1}, v{c+2}, v{c+3}")
        a(f"s_nop 1\nv_permlane16_swap_b32 v{R}, v{R+2}\nv_permlane16_swap_b32 v{R+1}, v{R+3}")
        a(f"s_nop 1\nbuffer_store_dwordx4 {vr(R)}, v8, s[{osrd}:{osrd+3}], 0 offen offset:{64*p}{st}")
    c = ACC + 32
    a(f"v_cvt_pk_bf16_f32 v176, v{c}, v{c+1}\nv_cvt_pk_bf16_f32 v177, v{c+2}, v{c+3}")
    a(f"buffer_store_dwordx2 v[176:177], v9, s[{osrd}:{osrd+3}], 0 offen offset:256{st}")

def k2_standalone(a):
    k2_prologue(a); gp.T(a, 0)
    a("s_cmp_ge_u32 s32, 5\ns_cbranch_scc1 L_k2_nopart")
    k2_partial_loads(a)
    a("L_k2_nopart:\ns_cmp_ge_u32 s32, 4\ns_cbranch_scc1 L_k2_noge")
    k2_ge_loads(a)
    a("L_k2_noge:")
    dma_w144(a, "wf", 8, WF_OFF, 8, 32, 0, [1, 2, 3, 4, 5])
    dma_w144(a, "wo", 12, WO_OFF, 8, 32, 0, [1, 2, 3, 4, 5])
    a("s_cmp_ge_u32 s32, 5\ns_cbranch_scc1 L_k2_nosum")
    a("s_lshl_b32 s39, s32, 6\nv_add_u32 v6, s39, v0\ns_movk_i32 s41, 288\nv_cmp_gt_u32 vcc, s41, v6\ns_nop 1")
    X, T = k2_partial_sum(a)
    a("s_waitcnt vmcnt(10)")
    gp.T(a, 1)
    k2_partial_math(a, X, T)
    a("L_k2_nosum:")
    k2_fe(a)
    a("s_waitcnt vmcnt(5) lgkmcnt(0)\ns_barrier")
    gp.T(a, 2)
    k2_fe_run(a)
    gp.T(a, 3)
    a("s_waitcnt vmcnt(0) lgkmcnt(0)\ns_barrier\ns_cmp_ge_u32 s32, 4\ns_cbranch_scc1 L_k2_end")
    gp.T(a, 4)
    k2_joint(a)
    if gp.PROF:
        gp.T(a, 5); a("s_waitcnt vmcnt(0)"); gp.T(a, 6); a("s_cmp_lg_u32 s32, 0\ns_cbranch_scc1 L_k2_end"); gp.Tdump(a, 1, 7)
    a("L_k2_end:\ns_endpgm")

SPIN = 400000
def k2_poll(a):
    a(f"""
    s_cmp_lg_u32 s32, 0
    s_cbranch_scc1 L_poll_done
    s_mul_i32 s39, s28, 640
    s_lshl_b32 s40, s29, 7
    s_add_u32 s39, s39, s40
    s_add_u32 s39, s39, {FL_WS}
    v_min_u32 v1, 19, v0
    v_lshl_add_u32 v1, v1, 2, s39
    s_mov_b32 s40, 0
    L_poll:
    buffer_load_dword v5, v1, s[20:23], 0 offen sc1
    s_add_u32 s40, s40, 1
    s_cmp_ge_u32 s40, {SPIN}
    s_cbranch_scc1 L_poll_done
    s_waitcnt vmcnt(0)
    v_cmp_ne_u32 vcc, 1, v5
    s_nop 1
    s_cmp_lg_u64 vcc, 0
    s_cbranch_scc1 L_poll
    L_poll_done:
    """)

def k2_fused(a):
    a("L_k2:")
    k2_poll(a)
    a("s_barrier")
    gp.T(a, 8)
    a("s_cmp_ge_u32 s32, 5\ns_cbranch_scc1 L_k2_nosum")
    k2_partial_loads(a, os.environ.get("PSC", " sc1"))
    a("s_cmp_ge_u32 s32, 4\ns_cbranch_scc1 L_k2_noge")
    k2_ge_loads(a, "")
    a("L_k2_noge:")
    X, T = k2_partial_sum(a)
    a("s_cmp_ge_u32 s32, 4\ns_cbranch_scc1 L_k2_w4\ns_waitcnt vmcnt(9)\ns_branch L_k2_go\nL_k2_w4:\ns_waitcnt vmcnt(0)\nL_k2_go:")
    gp.T(a, 9)
    k2_partial_math(a, X, T)
    a("L_k2_nosum:")
    k2_fe(a)
    a("s_cmp_lt_u32 s32, 4\ns_cbranch_scc1 L_k2_nw\ns_waitcnt vmcnt(0)\nL_k2_nw:\ns_waitcnt lgkmcnt(0)\ns_barrier")
    gp.T(a, 10)
    k2_fe_run(a)
    a("s_waitcnt lgkmcnt(0)\ns_barrier\ns_cmp_ge_u32 s32, 4\ns_cbranch_scc1 L_k1_end")
    gp.T(a, 11)
    k2_joint(a, os.environ.get("OSC", ""), osrd=72)
    if gp.PROF:
        gp.T(a, 12); a("s_waitcnt vmcnt(0)"); gp.T(a, 13); a("s_cmp_lg_u32 s32, 0\ns_cbranch_scc1 L_k1_end"); gp.Tdump(a, 0, 11)
```

```python
from asmlib import *
X_OFF, RING, SLOT, NSLOT, H_OFF = 0, 61440, 18432, 5, 153600
LDS1 = 162560
WF_OFF, WO_OFF, F_OFF, FE_OFF = 107520, 55296, 0, 4608
LDS2 = 140288
P_WS, GE_WS = 0, 3145728
FL_WS = 0x380000
BIG = 0x80000000
LOG2E = 1.4426950408889634
import struct
def f2u(x): return struct.unpack("<I", struct.pack("<f", x))[0]
GC1 = f2u(-2 * 0.7978845608028654 * LOG2E); GC2 = f2u(-2 * 0.7978845608028654 * LOG2E * 0.044715)
TS = f2u(2 * LOG2E)

def vr(b, n=4): return f"v[{b}:{b+n-1}]"

def srd(a, d, p, nbytes, add=None):
    if add is None:
        a(f"s_mov_b32 s{d}, s{p}\ns_and_b32 s{d+1}, s{p+1}, 0xffff")
    else:
        a(f"s_add_u32 s{d}, s{p}, {add}\ns_addc_u32 s{d+1}, s{p+1}, 0\ns_and_b32 s{d+1}, s{d+1}, 0xffff")
    a(f"s_mov_b32 s{d+2}, {nbytes}\ns_mov_b32 s{d+3}, 0x20000")

def wgmap(a, tag):
    a(f"""
    s_and_b32 s33, s2, 7
    s_lshr_b32 s34, s2, 3
    s_mul_i32 s35, s34, 52
    s_lshr_b32 s35, s35, 8
    s_mul_i32 s36, s35, 5
    s_sub_u32 s29, s34, s36
    s_mul_i32 s28, s33, 6
    s_add_u32 s28, s28, s35
    s_cmp_lt_u32 s2, 240
    s_cbranch_scc1 L_map_{tag}
    s_sub_u32 s33, s2, 240
    s_cmp_ge_u32 s33, 5
    s_cselect_b32 s35, 1, 0
    s_add_u32 s28, s35, 48
    s_mul_i32 s35, s35, 5
    s_sub_u32 s29, s33, s35
    L_map_{tag}:
    s_cmp_ge_u32 s28, 25
    s_cselect_b32 s30, 1, 0
    s_mul_i32 s33, s30, 25
    s_sub_u32 s31, s28, s33
    """)

def gelu(a, x, t0, t1, sc1, sc2):
    for r, u in zip(x, t0): a(f"v_mul_f32 v{u}, v{r}, v{r}")
    for r, u in zip(x, t0): a(f"v_fma_f32 v{u}, v{u}, v{sc2}, s{sc1}")
    for r, u in zip(x, t0): a(f"v_mul_f32 v{u}, v{u}, v{r}")
    for u in t0: a(f"v_exp_f32 v{u}, v{u}")
    if len(x) < 2: a("s_nop 0")
    for u in t0: a(f"v_add_f32 v{u}, 1.0, v{u}")
    for u in t0: a(f"v_rcp_f32 v{u}, v{u}")
    if len(x) < 2: a("s_nop 0")
    for r, u in zip(x, t0): a(f"v_mul_f32 v{r}, v{r}, v{u}")

def dma_w144(a, tag, srdreg, ldsbase, nw, swave, vlane, vt, first=0):
    j, rho, u, k = vt[:4]
    a(f"""
    s_sub_u32 s41, s{swave}, {first}
    s_lshl_b32 s40, s41, 6
    v_add_u32 v{j}, s40, v{vlane}
    s_lshl_b32 s41, s41, 10
    s_add_u32 s41, s41, {ldsbase}
    s_mov_b32 s42, 0
    s_movk_i32 s43, 3641
    s_cmp_eq_u32 s{swave}, {first}
    s_cselect_b32 s44, {40//nw+1}, {40//nw}
    L_w144_{tag}:
    v_mul_u32_u24 v{rho}, s43, v{j}
    v_lshrrev_b32 v{rho}, 16, v{rho}
    v_mul_u32_u24 v{u}, 18, v{rho}
    v_sub_u32 v{u}, v{j}, v{u}
    v_and_b32 v{k}, 4, v{rho}
    v_lshlrev_b32 v{k}, 1, v{k}
    v_and_b32 v{vt[4]}, 8, v{rho}
    v_lshrrev_b32 v{vt[4]}, 1, v{vt[4]}
    v_or_b32 v{k}, v{k}, v{vt[4]}
    v_and_b32 v{vt[4]}, 0xf3, v{rho}
    v_or_b32 v{k}, v{k}, v{vt[4]}
    s_mov_b32 m0, s41
    v_add_u32 v{j}, {64*nw}, v{j}
    v_mul_u32_u24 v{k}, 288, v{k}
    v_lshl_add_u32 v{k}, v{u}, 4, v{k}
    buffer_load_dwordx4 v{k}, s[{srdreg}:{srdreg+3}], 0 offen lds
    s_add_u32 s41, s41, {1024*nw}
    s_add_u32 s42, s42, 1
    s_cmp_lt_u32 s42, s44
    s_cbranch_scc1 L_w144_{tag}
    """)

def a144_addr(a, vdst, vlane, t0, t1):
    a(f"""
    v_lshrrev_b32 v{t0}, 5, v{vlane}
    v_lshlrev_b32 v{t0}, 4, v{t0}
    v_bfe_u32 v{t1}, v{vlane}, 4, 1
    v_lshl_add_u32 v{t0}, v{t1}, 2, v{t0}
    v_bfe_u32 v{t1}, v{vlane}, 2, 2
    v_add_u32 v{t0}, v{t0}, v{t1}
    v_mul_u32_u24 v{t0}, 288, v{t0}
    v_and_b32 v{t1}, 3, v{vlane}
    v_lshl_add_u32 v{vdst}, v{t1}, 3, v{t0}
    """)

def a144_tail_addr(a, vdst, vlane, t0, t1):
    a(f"""
    v_bfe_u32 v{t0}, v{vlane}, 4, 1
    v_lshlrev_b32 v{t0}, 1, v{t0}
    v_bfe_u32 v{t1}, v{vlane}, 5, 1
    v_or_b32 v{t0}, v{t0}, v{t1}
    v_bfe_u32 v{t1}, v{vlane}, 2, 2
    v_lshl_add_u32 v{t0}, v{t0}, 2, v{t1}
    v_add_u32 v{t0}, 128, v{t0}
    v_mul_u32_u24 v{t0}, 288, v{t0}
    v_and_b32 v{t1}, 3, v{vlane}
    v_lshl_add_u32 v{vdst}, v{t1}, 3, v{t0}
    """)

def proj_tile(a, acc, A, B, vA, vAt, aoff):
    for c in range(4):
        for p in range(2):
            a(f"ds_read_b64_tr_b16 {vr(A+4*c+2*p,2)}, v{vA} offset:{aoff + c*32*288 + p*2304}")
    a(f"ds_read_b64_tr_b16 {vr(A+16,2)}, v{vAt} offset:{aoff}")
    for c in range(4):
        a(f"s_waitcnt lgkmcnt({7-2*c})")
        src = "0" if c == 0 else vr(acc)
        a(f"v_mfma_f32_16x16x32_bf16 {vr(acc)}, {vr(A+4*c)}, {vr(B+4*c)}, {src}")
    a("s_waitcnt lgkmcnt(0)\ns_nop 7")
    a(f"v_mfma_f32_16x16x16_bf16 {vr(acc)}, {vr(A+16,2)}, {vr(B+16,2)}, {vr(acc)}")

def load_rows_B(a, B, vB, vBt):
    for c in range(4): a(f"ds_read_b128 {vr(B+4*c)}, v{vB} offset:{64*c}")
    a(f"ds_read_b64 {vr(B+16,2)}, v{vBt}")

PROF = False
TS_WS = 0x400000
def setprof(p):
    global PROF
    PROF = p
TMAP = None
def T(a, i):
    if TMAP is not None:
        if i not in TMAP: return
        i = TMAP[i]
    if PROF: a(f"s_memrealtime s[{80+2*i}:{81+2*i}]")
def Tdump(a, role, n, srdreg=20, base=TS_WS):
    if not PROF: return
    a("s_waitcnt lgkmcnt(0)\nv_mov_b32 v200, 0\nv_and_b32 v201, 63, v0")
    for i in range(n):
        a(f"v_mov_b32 v202, s{80+2*i}\nv_cmp_eq_u32 vcc, {i}, v201\ns_nop 1\nv_cndmask_b32 v200, v200, v202, vcc")
    a(f"s_lshl_b32 s62, s2, 7\ns_add_u32 s62, s62, {base + role*64}\nv_lshl_add_u32 v201, v201, 2, s62\nv_mov_b32 v202, {BIG}\nv_cmp_gt_u32 vcc, 16, v0\nv_and_b32 v203, 63, v0\nv_cmp_gt_u32 vcc, 16, v203\ns_nop 1\nv_cndmask_b32 v201, v202, v201, vcc")
    a(f"buffer_store_dword v200, v201, s[{srdreg}:{srdreg+3}], 0 offen")

class LQ:
    def __init__(self, a): self.a = a; self.q = []
    def rd(self, tag, text): self.q.append(tag); return text
    def wait(self, tag):
        idx = max(i for i, t in enumerate(self.q) if t == tag)
        return f"s_waitcnt lgkmcnt({min(len(self.q) - 1 - idx, 15)})"
def gelu_pk(a, x, t, sregs):
    n = len(x); X = x[0]; s1, v2 = sregs
    for i in range(0, n, 2): a(f"v_pk_mul_f32 {vr(t+i,2)}, {vr(X+i,2)}, {vr(X+i,2)}")
    for i in range(0, n, 2): a(f"v_pk_fma_f32 {vr(t+i,2)}, {vr(t+i,2)}, {vr(v2,2)}, s[{s1}:{s1+1}]")
    for i in range(0, n, 2): a(f"v_pk_mul_f32 {vr(t+i,2)}, {vr(t+i,2)}, {vr(X+i,2)}")
    for i in range(n): a(f"v_exp_f32 v{t+i}, v{t+i}")
    if n < 4: a("s_nop 0")
    for i in range(0, n, 2): a(f"v_pk_add_f32 {vr(t+i,2)}, {vr(t+i,2)}, 1.0 op_sel_hi:[1,0]")
    for i in range(n): a(f"v_rcp_f32 v{t+i}, v{t+i}")
    if n < 4: a("s_nop 0")
    for i in range(0, n, 2): a(f"v_pk_mul_f32 {vr(X+i,2)}, {vr(X+i,2)}, {vr(t+i,2)}")
```

```python
from gen_k1 import *

def loader(a):
    a(f"""
    L_loader:
    s_sub_u32 s33, s32, 4
    v_mov_b32 v9, {BIG}
    v_lshrrev_b32 v2, 2, v0
    v_mul_u32_u24 v2, 288, v2
    v_lshrrev_b32 v3, 4, v0
    v_and_b32 v3, 2, v3
    v_and_b32 v4, 3, v0
    v_xor_b32 v3, v3, v4
    v_lshl_add_u32 v2, v3, 4, v2
    s_lshl_b32 s41, s29, 6
    v_add_u32 v10, s41, v2
    s_cmp_eq_u32 s29, 4
    s_cselect_b32 s41, 1, 100
    v_cmp_lt_u32 vcc, s41, v3
    s_mul_i32 s55, s33, 4608
    s_lshl_b32 s45, s33, 10
    s_mov_b32 s54, {RING}
    v_cndmask_b32 v10, v10, v9, vcc
    """)
    def w1_chunk(tag, tail=False):
        for e in range(3 if tail else 5):
            v = 10
            if (not tail and e == 4) or (tail and e == 2): a(f"s_cmp_ge_u32 s33, 2\ns_cbranch_scc1 L_w1skip_{tag}")
            a(f"s_add_u32 s57, s54, s45\ns_add_u32 m0, s57, {4096*e}\ns_add_u32 s58, s55, {18432*e}")
            if tail and e == 2:
                a(f"s_cmp_eq_u32 s33, 1\ns_cselect_b32 s59, {BIG}, 0\nv_or_b32 v16, s59, v10"); v = 16
            a(f"buffer_load_dwordx4 v{v}, s[12:15], s58 offen lds")
        a(f"L_w1skip_{tag}:\ns_add_u32 s55, s55, 82944"); slot_next(a, 54)
    a("s_mov_b32 s60, 0\nL_ld0:"); w1_chunk("p")
    a("s_add_u32 s60, s60, 1\ns_cmp_lt_u32 s60, 4\ns_cbranch_scc1 L_ld0")
    for e in range(5):
        a(f"""
        s_add_u32 s52, s33, {4*e}
        s_cmp_ge_u32 s52, 9
        s_cselect_b32 s53, 9, 0
        s_cselect_b32 s{46+e}, 41472, 0
        s_sub_u32 s52, s52, s53
        s_lshl_b32 s52, s52, 6
        v_add_u32 v1, s52, v0
        v_mul_u32_u24 v2, 3641, v1
        v_lshrrev_b32 v2, 16, v2
        v_mul_u32_u24 v3, 18, v2
        v_sub_u32 v3, v1, v3
        v_and_b32 v4, 4, v2
        v_lshlrev_b32 v4, 1, v4
        v_and_b32 v5, 8, v2
        v_lshrrev_b32 v5, 1, v5
        v_or_b32 v4, v4, v5
        v_and_b32 v5, 0x13, v2
        v_or_b32 v4, v4, v5
        v_mul_u32_u24 v{21+e}, 288, v4
        v_lshl_add_u32 v{21+e}, v3, 4, v{21+e}
        s_cmp_eq_u32 s29, 4
        s_cselect_b32 s53, 15, 100
        v_cmp_lt_u32 vcc, s53, v4
        s_mul_i32 s53, s29, 9216
        v_add_u32 v4, s53, v{21+e}
        v_cndmask_b32 v{11+e}, v4, v9, vcc
        """)
    a("s_mov_b32 s56, 0\ns_cmp_ge_u32 s33, 1\ns_cselect_b32 s61, 9216, 0")
    def w2_chunk(tag, tail=False):
        for e in range(3 if tail else 5):
            if (not tail and e == 4): a(f"s_cmp_ge_u32 s33, 2\ns_cbranch_scc1 L_w2skip_{tag}")
            if (tail and e == 2): a(f"s_cmp_ge_u32 s33, 1\ns_cbranch_scc1 L_w2skip_{tag}")
            a(f"s_add_u32 s57, s54, s45\ns_add_u32 m0, s57, {4096*e}\ns_add_u32 s58, s56, s{46+e}")
            a(f"buffer_load_dwordx4 v{11+e}, s[16:19], s58 offen lds")
        a(f"L_w2skip_{tag}:\ns_add_u32 s56, s56, 82944"); slot_next(a, 54)
    cnt = [4]*7 + [2] + [4]*7 + [2]
    def allowed(n): return sum(cnt[c] for c in range(n+1, min(n+4, 16)))
    a("s_mov_b32 s60, 0\nL_ld1:")
    a(f"s_waitcnt vmcnt({min(allowed(n) for n in range(0,3))})\ns_barrier"); w1_chunk("l1")
    a("s_add_u32 s60, s60, 1\ns_cmp_lt_u32 s60, 3\ns_cbranch_scc1 L_ld1")
    a(f"s_waitcnt vmcnt({allowed(3)})\ns_barrier"); w1_chunk("t", True)
    a("s_mov_b32 s60, 0\nL_ld2:")
    a("s_waitcnt vmcnt(10)\ns_barrier"); w2_chunk("l2")
    a("s_add_u32 s60, s60, 1\ns_cmp_lt_u32 s60, 4\ns_cbranch_scc1 L_ld2")
    a("s_barrier\ns_mov_b32 s60, 0\ns_mov_b32 s54, 0\nL_ld3:"); w2_chunk("l3")
    a("s_add_u32 s60, s60, 1\ns_cmp_lt_u32 s60, 2\ns_cbranch_scc1 L_ld3")
    a("s_waitcnt vmcnt(8)\ns_barrier"); w2_chunk("l4")
    a(f"s_mov_b32 s54, {RING + 2*SLOT}"); w2_chunk("t", True)
    a("s_waitcnt vmcnt(6)\ns_barrier\ns_waitcnt vmcnt(0)\ns_barrier")
    w_dma(a, 64, WF_OFF, "wf")
    w_dma(a, 68, WO_OFF, "wo")
    ge_check_load(a)
    ge_check_wait(a)

def compute(a, store_flags):
    ACC, A1, B1 = 32, 44, 80
    a("s_mov_b32 s33, s32"); x_load(a); flags_reset(a)
    a(f"""
    s_and_b32 s33, s32, 1
    s_lshr_b32 s34, s32, 1
    v_and_b32 v1, 15, v0
    v_lshrrev_b32 v2, 4, v0
    v_lshrrev_b32 v3, 2, v1
    v_lshl_add_u32 v3, v2, 3, v3
    v_lshlrev_b32 v3, 6, v3
    v_and_b32 v4, 1, v2
    v_lshl_add_u32 v3, v4, 5, v3
    v_and_b32 v4, 3, v1
    v_lshl_add_u32 v3, v4, 3, v3
    s_lshl_b32 s35, s33, 5
    v_xor_b32 v4, s35, v3
    s_mul_i32 s35, s34, 48
    v_add_u32 v6, s35, v1
    v_mul_u32_u24 v7, 608, v6
    v_lshl_add_u32 v7, v2, 4, v7
    s_mov_b32 s36, {RING}
    s_mov_b32 s38, 0
    """)
    for i in range(12): a(f"v_mov_b32 v{ACC+i}, 0")
    gp.T(a, 0)
    a("s_waitcnt vmcnt(0)"); reset_count(a)
    def Brd(m, tt): return f"ds_read_b128 {vr(B1+12*m+4*tt)}, v7 offset:{64*m + 9728*tt}"
    def Ard(m, p): return f"ds_read_b64_tr_b16 {vr(A1+4*m+2*p,2)}, v8 offset:{2048*m + 256*p}"
    def mf(m, tt): return f"v_mfma_f32_16x16x32_bf16 {vr(ACC+4*tt)}, {vr(A1+4*m)}, {vr(B1+12*m+4*tt)}, {vr(ACC+4*tt)}"
    def chunk(nk, prefetch):
        q = LQ(a)
        a("v_add_u32 v8, s36, v4")
        if prefetch: a("v_add_u32 v7, 608, v7")
        for m in range(3):
            for p in range(2): a(q.rd(f"A{m}", Ard(m, p)))
        slot_next(a, 36)
        for m in range(nk):
            a(q.wait(f"A{m}"))
            a(mf(m, 0))
            if m + 3 < nk:
                for p in range(2): a(q.rd(f"A{m+3}", Ard(m+3, p)))
            a(mf(m, 1))
            if prefetch: a(q.rd("B", Brd(m, 0)))
            a(mf(m, 2))
            if prefetch: a(q.rd("B", Brd(m, 1))); a(q.rd("B", Brd(m, 2)))
    a("s_barrier")
    for m in range(9):
        for tt in range(3): a(Brd(m, tt))
    a("s_branch L_c1b\nL_c1:\ns_barrier\nL_c1b:")
    if gp.PROF: a("s_cmp_lg_u32 s38, 0\ns_cbranch_scc1 L_not1\ns_memrealtime s[82:83]\nL_not1:")
    chunk(9, True)
    a("s_add_u32 s38, s38, 1\ns_cmp_lt_u32 s38, 7\ns_cbranch_scc1 L_c1")
    gp.T(a, 2)
    a("s_barrier"); chunk(5, False)
    a("s_waitcnt lgkmcnt(0)\ns_barrier")
    ready_bcast(a)
    a(f"""
    v_mul_u32_u24 v14, 80, v6
    v_lshl_add_u32 v14, v2, 3, v14
    s_lshl_b32 s39, s33, 5
    s_add_u32 s39, s39, {H_OFF}
    v_add_u32 v14, s39, v14
    s_mul_i32 s39, s31, 80
    s_sub_u32 s39, s39, 7
    v_add_u32 v15, s39, v6
    s_mov_b32 s40, {GC1}
    s_mov_b32 s41, {GC1}
    v_mov_b32 v16, {GC2}
    v_mov_b32 v17, {GC2}
    s_movk_i32 s42, 2000
    """)
    a144_addr(a, 4, 0, 10, 11)
    gelu_pk(a, [ACC+i for i in range(12)], 64, (40, 16))
    for tt in range(3):
        a(f"v_add_u32 v18, {16*tt}, v15\nv_cmp_gt_u32 vcc, s42, v18")
        a(f"v_cvt_pk_bf16_f32 v64, v{ACC+4*tt}, v{ACC+4*tt+1}\nv_cvt_pk_bf16_f32 v65, v{ACC+4*tt+2}, v{ACC+4*tt+3}")
        a(f"v_cndmask_b32 v{66+2*tt}, 0, v64, vcc\nv_cndmask_b32 v{67+2*tt}, 0, v65, vcc")
        a(f"ds_write_b64 v14, {vr(66+2*tt,2)} offset:{1280*tt}")
    ACC2, A2, B2 = 32, 64, 92
    a(f"""
    s_lshl_b32 s39, s32, 6
    v_add_u32 v5, 256, v4
    v_add_u32 v4, s39, v4
    v_mul_u32_u24 v6, 160, v1
    v_lshl_add_u32 v6, v2, 4, v6
    v_add_u32 v6, {H_OFF}, v6
    s_min_u32 s39, s32, 2
    s_mul_i32 s39, s39, 2560
    v_add_u32 v7, s39, v6
    s_mov_b32 s38, 0
    """)
    a("s_waitcnt lgkmcnt(0)")
    gp.T(a, 4)
    a(f"""
    v_add_u32 v8, {RING}, v4
    v_add_u32 v9, {RING}, v5
    v_add_u32 v12, {RING + 3*SLOT}, v4
    v_add_u32 v13, {RING + 3*SLOT}, v5
    """)
    CH = [(12, 13, 0), (12, 13, SLOT), (8, 9, 0), (8, 9, SLOT), (4, 5, 0), (4, 5, SLOT), (4, 5, 2*SLOT), (8, 9, 2*SLOT)]
    def A2rd(tap, i):
        A = A2 + 12*(tap & 1); va, vt, off = CH[tap >> 1]; off += 9216*(tap & 1)
        if i < 4: return f"ds_read_b64_tr_b16 {vr(A+4*(i//2)+2*(i%2),2)}, v{va} offset:{off+32*(i//2)+2304*(i%2)}"
        return f"ds_read_b64_tr_b16 {vr(A+8+2*(i-4),2)}, v{vt} offset:{off+2304*(i-4)}"
    def B2rd(tap, i):
        B = B2 + 16*(tap & 1)
        if i < 3: return f"ds_read_b128 {vr(B+4*i)}, v6 offset:{2560*i+80*tap}"
        return f"ds_read_b128 {vr(B+12)}, v7 offset:{80*tap}"
    def mf2(tap):
        A = A2 + 12*(tap & 1); B = B2 + 16*(tap & 1); l = []
        for d in range(2):
            for tt in range(3):
                c = ACC2 + 4*(3*d+tt); l.append(f"v_mfma_f32_16x16x32_bf16 {vr(c)}, {vr(A+4*d)}, {vr(B+4*tt)}, {vr(c) if tap else 0}")
        c = ACC2 + 24; l.append(f"v_mfma_f32_16x16x32_bf16 {vr(c)}, {vr(A+8)}, {vr(B+12)}, {vr(c) if tap else 0}")
        return l
    q = LQ(a)
    a("s_barrier")
    for tap in range(2):
        for i in range(6): a(q.rd(f"t{tap}", A2rd(tap, i)))
        for i in range(4): a(q.rd(f"t{tap}", B2rd(tap, i)))
    for tap in range(15):
        if tap in (6, 8): a("s_barrier")
        if tap == 13: ready_load(a)
        a(q.wait(f"t{tap}"))
        m = mf2(tap); n = tap + 2
        pre = {2: [("A", 0), ("A", 1)], 3: [("B", 0)], 4: [("B", 1)], 5: [("B", 2), ("A", 2), ("A", 3)], 6: [("A", 4), ("A", 5), ("B", 3)]}
        for k in range(7):
            a(m[k])
            if n < 15:
                for w, i in pre.get(k, []): a(q.rd(f"t{n}", A2rd(n, i) if w == "A" else B2rd(n, i)))
    gp.T(a, 6)
    a(f"""
    v_lshrrev_b32 v3, 3, v1
    v_mul_u32_u24 v3, 11520, v3
    v_lshl_add_u32 v3, v2, 6, v3
    v_and_b32 v4, 7, v1
    v_lshl_add_u32 v3, v4, 3, v3
    s_mul_i32 s39, s28, 57600
    s_mul_i32 s40, s29, 2304
    s_add_u32 s39, s39, s40
    s_add_u32 s39, s39, {P_WS}
    v_add_u32 v3, s39, v3
    s_lshl_b32 s40, s32, 9
    v_add_u32 v4, s40, v3
    v_mov_b32 v9, {BIG}
    v_cmp_gt_u32 vcc, 8, v1
    s_min_u32 s41, s32, 2
    s_mul_i32 s41, s41, 23040
    v_cndmask_b32 v5, v9, v4, vcc
    s_add_u32 s41, s41, 2048
    v_add_u32 v6, s41, v3
    v_cndmask_b32 v7, v9, v6, vcc
    s_cmp_eq_u32 s32, 2
    s_cselect_b64 vcc, -1, 0
    v_cndmask_b32 v6, v6, v7, vcc
    s_cmp_eq_u32 s32, 3
    s_cselect_b64 vcc, -1, 0
    v_cndmask_b32 v6, v6, v9, vcc
    s_movk_i32 s42, 23040
    s_mov_b32 s43, 46080
    """)
    for t in range(7):
        c = ACC2 + 4*t
        a(f"v_cvt_pk_bf16_f32 v{64+2*t}, v{c}, v{c+1}\nv_cvt_pk_bf16_f32 v{65+2*t}, v{c+2}, v{c+3}")
    for d in range(2):
        for tt in range(3):
            t = 3*d + tt
            va, so = [(4, "0"), (4, "s42"), (5, "s43")][tt]
            a(f"buffer_store_dwordx2 {vr(64+2*t,2)}, v{va}, s[20:23], {so} offen offset:{256*d}{store_flags}")
    a(f"buffer_store_dwordx2 {vr(76,2)}, v6, s[20:23], 0 offen{store_flags}")
```

```python
from gen_parts import *
import os
import gen_parts as gp

def k2_prologue(a):
    a(f"""
    s_cmp_ge_u32 s2, 250
    s_cbranch_scc1 L_k2_end
    s_load_dwordx2 s[4:5], s[0:1], 32
    s_load_dwordx4 s[24:27], s[0:1], 48
    s_load_dwordx2 s[6:7], s[0:1], 72
    v_lshrrev_b32 v1, 6, v0
    v_and_b32 v0, 63, v0
    v_readfirstlane_b32 s32, v1
    """)
    wgmap(a, "k2")
    a("s_waitcnt lgkmcnt(0)")
    srd(a, 8, 4, 41472); srd(a, 12, 24, 41472); srd(a, 16, 26, 4608000); srd(a, 20, 6, 0x1000000)

def k2_ge_loads(a, sc=""):
    a(f"""
    v_and_b32 v74, 7, v0
    v_mul_u32_u24 v74, 576, v74
    v_lshrrev_b32 v76, 4, v0
    s_mul_i32 s39, s30, 4608
    s_add_u32 s39, s39, {GE_WS}
    v_add_u32 v74, s39, v74
    v_lshl_add_u32 v75, v76, 4, v74
    v_lshl_add_u32 v74, v76, 5, v74
    """)

def k2_ge_issue(a, sc=""):
    for c in range(4):
        for h in range(2): a(f"buffer_load_dwordx4 {vr(16+8*c+4*h)}, v74, s[20:23], 0 offen offset:{128*c+16*h}{sc}")
    a(f"buffer_load_dwordx4 {vr(48)}, v75, s[20:23], 0 offen offset:512{sc}")

def k2_partial_loads(a, sc=""):
    a(f"""
    s_lshl_b32 s39, s32, 6
    v_add_u32 v77, s39, v0
    s_mul_i32 s40, s28, 5
    s_add_u32 s40, s40, s29
    s_mul_i32 s40, s40, 11520
    s_add_u32 s40, s40, {P_WS}
    v_lshl_add_u32 v78, v77, 3, s40
    v_mov_b32 v9, {BIG}
    s_movk_i32 s41, 288
    v_cmp_gt_u32 vcc, s41, v77
    s_movk_i32 s42, 4608
    s_movk_i32 s43, 9216
    v_cndmask_b32 v78, v9, v78, vcc
    """)

def k2_partial_issue(a, sc=""):
    for s_, (so, off) in enumerate([("0", 0), ("0", 2304), ("s42", 0), ("s42", 2304), ("s43", 0)]):
        a(f"buffer_load_dwordx2 {vr(52+2*s_,2)}, v78, s[20:23], {so} offen offset:{off}{sc}")

def k2_partial_sum(a):
    X = [64, 65, 66, 67]; T = [68, 69, 70, 71]
    a(f"""
    v_lshrrev_b32 v10, 5, v77
    v_lshlrev_b32 v10, 5, v10
    v_bfe_u32 v11, v77, 3, 2
    v_lshl_add_u32 v10, v11, 3, v10
    v_and_b32 v11, 7, v77
    v_mul_u32_u24 v11, 288, v11
    v_add_u32 v10, v10, v11
    v_add_u32 v10, {F_OFF}, v10
    v_mov_b32 v11, {F_OFF + 15*288}
    v_cndmask_b32 v10, v11, v10, vcc
    s_mov_b32 s40, {GC1}
    v_mov_b32 v12, {GC2}
    v_mov_b32 v13, 0xffff0000
    """)
    return X, T

def k2_partial_math(a, X, T):
    for s_ in range(5):
        r = 52 + 2*s_
        d = X if s_ == 0 else T
        a(f"v_lshlrev_b32 v{d[0]}, 16, v{r}\nv_and_b32 v{d[1]}, v13, v{r}\nv_lshlrev_b32 v{d[2]}, 16, v{r+1}\nv_and_b32 v{d[3]}, v13, v{r+1}")
        if s_ > 0:
            a(f"v_pk_add_f32 {vr(X[0],2)}, {vr(X[0],2)}, {vr(T[0],2)}\nv_pk_add_f32 {vr(X[2],2)}, {vr(X[2],2)}, {vr(T[2],2)}")
    gelu(a, X, T, None, 40, 12)
    a(f"v_cvt_pk_bf16_f32 v72, v{X[0]}, v{X[1]}\nv_cvt_pk_bf16_f32 v73, v{X[2]}, v{X[3]}\nds_write_b64 v10, v[72:73]")

def k2_fe(a):
    a144_addr(a, 4, 0, 10, 11); a144_tail_addr(a, 5, 0, 10, 11)
    a(f"""
    v_and_b32 v1, 15, v0
    v_lshrrev_b32 v2, 4, v0
    v_mul_u32_u24 v6, 288, v1
    v_add_u32 v6, {F_OFF}, v6
    v_lshl_add_u32 v7, v2, 3, v6
    v_add_u32 v7, 256, v7
    v_lshl_add_u32 v6, v2, 4, v6
    s_lshl_b32 s39, s32, 5
    s_add_u32 s39, s39, {WF_OFF}
    v_add_u32 v14, s39, v4
    v_add_u32 v15, s39, v5
    v_mul_u32_u24 v8, 576, v1
    v_lshl_add_u32 v8, v2, 4, v8
    s_lshl_b32 s41, s32, 6
    s_add_u32 s41, s41, {FE_OFF}
    v_add_u32 v8, s41, v8
    s_mov_b32 s44, {TS}
    """)

def k2_fe_run(a):
    load_rows_B(a, 64, 6, 7)
    for rep in range(2):
        if rep == 1: a("s_cmp_lg_u32 s32, 7\ns_cbranch_scc1 L_fe_done")
        proj_tile(a, 84, 92, 64, 14, 15, 32*rep)
        a("s_nop 7")
        for i in range(4): a(f"v_mul_f32 v{88+i}, s44, v{84+i}")
        a(f"ds_write_b128 v8, {vr(88)} offset:{64*rep}")
    a("L_fe_done:")

def interleave(main, extra, every):
    out = []; e = list(extra)
    for i, x in enumerate(main):
        out.append(x)
        if e and (i + 1) % every == 0: out.append(e.pop(0))
    return out + e

def k2_joint(a, st="", osrd=16):
    GE, ACC, AB, FE = 16, 52, [88, 124], 160
    BB = [196, 200]
    a(f"""
    v_lshrrev_b32 v6, 3, v1
    s_lshl_b32 s39, s32, 1
    v_add_u32 v6, s39, v6
    v_mul_u32_u24 v6, 576, v6
    v_add_u32 v6, {FE_OFF}, v6
    v_lshl_add_u32 v7, v2, 4, v6
    v_lshl_add_u32 v6, v2, 5, v6
    v_add_u32 v4, {WO_OFF}, v4
    v_add_u32 v5, {WO_OFF}, v5
    """)
    for c in range(4):
        for h in range(2): a(f"ds_read_b128 {vr(FE+8*c+4*h)}, v6 offset:{128*c+16*h}")
    a(f"ds_read_b128 {vr(FE+32)}, v7 offset:512")
    def areads(c):
        A = AB[c % 2]; l = []
        for vt in range(9):
            if c < 4:
                for p in range(2): l.append(f"ds_read_b64_tr_b16 {vr(A+4*vt+2*p,2)}, v4 offset:{32*vt + c*32*288 + p*2304}")
            else:
                l.append(f"ds_read_b64_tr_b16 {vr(A+4*vt,2)}, v5 offset:{32*vt}")
        return l
    def mf(c):
        A = AB[c % 2]; B = BB[c % 2]; l = []
        for vt in range(9):
            src = "0" if c == 0 else vr(ACC+4*vt)
            if c < 4: l.append(f"v_mfma_f32_16x16x32_bf16 {vr(ACC+4*vt)}, {vr(A+4*vt)}, {vr(B)}, {src}")
            else: l.append(f"v_mfma_f32_16x16x16_bf16 {vr(ACC+4*vt)}, {vr(A+4*vt,2)}, {vr(B,2)}, {src}")
        return l
    def tanh(c):
        n = 8 if c < 4 else 4
        x = [GE + 8*c + i for i in range(n)]; B = BB[c % 2]; l = []
        for i in range(n): l.append(f"v_exp_f32 v{x[i]}, v{x[i]}")
        for i in range(0, n, 2): l.append(f"v_pk_add_f32 {vr(x[i],2)}, {vr(x[i],2)}, 1.0 op_sel_hi:[1,0]")
        for i in range(n): l.append(f"v_rcp_f32 v{x[i]}, v{x[i]}")
        for i in range(0, n, 2): l.append(f"v_pk_fma_f32 {vr(x[i],2)}, {vr(x[i],2)}, s[46:47], 1.0 op_sel_hi:[1,1,0]")
        for i in range(0, n, 2): l.append(f"v_cvt_pk_bf16_f32 v{B+i//2}, v{x[i]}, v{x[i+1]}")
        return l
    a(f"""
    s_mov_b32 s46, 0xc0000000
    s_mov_b32 s47, 0xc0000000
    s_mul_i32 s39, s30, 1000
    s_mul_i32 s40, s31, 40
    s_add_u32 s39, s39, s40
    s_lshl_b32 s40, s29, 3
    s_add_u32 s39, s39, s40
    s_lshl_b32 s40, s32, 1
    s_add_u32 s39, s39, s40
    s_mul_i32 s39, s39, 2304
    v_mul_u32_u24 v8, 288, v1
    v_add_u32 v8, s39, v8
    v_lshl_add_u32 v9, v2, 3, v8
    v_and_b32 v10, 1, v2
    v_lshl_add_u32 v8, v10, 5, v8
    v_lshrrev_b32 v10, 1, v2
    v_lshl_add_u32 v8, v10, 4, v8
    s_waitcnt vmcnt(0) lgkmcnt(0)
    """)
    for i in range(0, 36, 2): a(f"v_pk_add_f32 {vr(GE+i,2)}, {vr(GE+i,2)}, {vr(FE+i,2)}")
    for x in areads(0)[:15]: a(x)
    t = tanh(0)
    for x in interleave(t[:8], areads(0)[15:], 2): a(x)
    for x in t[8:]: a(x)
    for c in range(1, 5):
        a("s_waitcnt lgkmcnt(0)")
        r = areads(c)
        for x in r[:15]: a(x)
        t = tanh(c); m = mf(c-1)
        head = interleave(t[:8] if c < 4 else t[:4], r[15:], 2)
        k = 8 if c < 4 else 4
        for x in interleave(head + t[k:], m, 3 if c < 4 else 1): a(x)
    a("s_waitcnt lgkmcnt(0)\ns_nop 1")
    for x in mf(4): a(x)
    a("s_nop 1")
    for p in range(4):
        R = 160 + 4*p
        for h in range(2):
            c = ACC + 4*(2*p+h)
            a(f"v_cvt_pk_bf16_f32 v{R+2*h}, v{c}, v{c+1}\nv_cvt_pk_bf16_f32 v{R+2*h+1}, v{c+2}, v{c+3}")
        a(f"s_nop 1\nv_permlane16_swap_b32 v{R}, v{R+2}\nv_permlane16_swap_b32 v{R+1}, v{R+3}")
        a(f"s_nop 1\nbuffer_store_dwordx4 {vr(R)}, v8, s[{osrd}:{osrd+3}], 0 offen offset:{64*p}{st}")
    c = ACC + 32
    a(f"v_cvt_pk_bf16_f32 v176, v{c}, v{c+1}\nv_cvt_pk_bf16_f32 v177, v{c+2}, v{c+3}")
    a(f"buffer_store_dwordx2 v[176:177], v9, s[{osrd}:{osrd+3}], 0 offen offset:256{st}")

def k2_standalone(a):
    k2_prologue(a); gp.T(a, 0)
    a("s_cmp_ge_u32 s32, 5\ns_cbranch_scc1 L_k2_nopart")
    k2_partial_loads(a)
    a("L_k2_nopart:\ns_cmp_ge_u32 s32, 4\ns_cbranch_scc1 L_k2_noge")
    k2_ge_loads(a)
    a("L_k2_noge:")
    dma_w144(a, "wf", 8, WF_OFF, 8, 32, 0, [1, 2, 3, 4, 5])
    dma_w144(a, "wo", 12, WO_OFF, 8, 32, 0, [1, 2, 3, 4, 5])
    a("s_cmp_ge_u32 s32, 5\ns_cbranch_scc1 L_k2_nosum")
    a("s_lshl_b32 s39, s32, 6\nv_add_u32 v6, s39, v0\ns_movk_i32 s41, 288\nv_cmp_gt_u32 vcc, s41, v6\ns_nop 1")
    X, T = k2_partial_sum(a)
    a("s_waitcnt vmcnt(10)")
    gp.T(a, 1)
    k2_partial_math(a, X, T)
    a("L_k2_nosum:")
    k2_fe(a)
    a("s_waitcnt vmcnt(5) lgkmcnt(0)\ns_barrier")
    gp.T(a, 2)
    k2_fe_run(a)
    gp.T(a, 3)
    a("s_waitcnt vmcnt(0) lgkmcnt(0)\ns_barrier\ns_cmp_ge_u32 s32, 4\ns_cbranch_scc1 L_k2_end")
    gp.T(a, 4)
    k2_joint(a)
    if gp.PROF:
        gp.T(a, 5); a("s_waitcnt vmcnt(0)"); gp.T(a, 6); a("s_cmp_lg_u32 s32, 0\ns_cbranch_scc1 L_k2_end"); gp.Tdump(a, 1, 7)
    a("L_k2_end:\ns_endpgm")

SPIN = 400000
def k2_poll(a):
    a(f"""
    s_cmp_lg_u32 s32, 4
    s_cbranch_scc1 L_poll_done
    s_mul_i32 s58, s28, 640
    s_lshl_b32 s59, s29, 7
    s_add_u32 s58, s58, s59
    s_add_u32 s58, s58, {FL_WS}
    v_min_u32 v79, 19, v0
    v_lshl_add_u32 v79, v79, 2, s58
    s_mov_b32 s59, 0
    L_poll:
    buffer_load_dword v80, v79, s[20:23], 0 offen sc1
    s_add_u32 s59, s59, 1
    s_cmp_ge_u32 s59, {SPIN}
    s_cbranch_scc1 L_poll_done
    s_waitcnt vmcnt(0)
    v_cmp_ne_u32 vcc, 1, v80
    s_nop 1
    s_cmp_lg_u64 vcc, 0
    s_cbranch_scc1 L_poll
    L_poll_done:
    """)

def k2_fused(a):
    a("L_k2:")
    k2_fe(a)
    k2_partial_loads(a)
    X, T = k2_partial_sum(a)
    k2_ge_loads(a)
    k2_poll(a)
    a("s_barrier")
    gp.T(a, 8)
    a("s_cmp_ge_u32 s32, 5\ns_cbranch_scc1 L_k2_nosum")
    k2_partial_issue(a, os.environ.get("PSC", " sc1"))
    a("s_cmp_ge_u32 s32, 4\ns_cbranch_scc1 L_k2_noge")
    k2_ge_issue(a, "")
    a("L_k2_noge:")
    a("s_cmp_ge_u32 s32, 4\ns_cbranch_scc1 L_k2_w4\ns_waitcnt vmcnt(9)\ns_branch L_k2_go\nL_k2_w4:\ns_waitcnt vmcnt(0)\nL_k2_go:")
    gp.T(a, 9)
    k2_partial_math(a, X, T)
    a("L_k2_nosum:")
    a("s_cmp_lt_u32 s32, 4\ns_cbranch_scc1 L_k2_nw\ns_waitcnt vmcnt(0)\nL_k2_nw:\ns_waitcnt lgkmcnt(0)\ns_barrier")
    gp.T(a, 10)
    k2_fe_run(a)
    a("s_waitcnt lgkmcnt(0)\ns_barrier\ns_cmp_ge_u32 s32, 4\ns_cbranch_scc1 L_k1_end")
    gp.T(a, 11)
    k2_joint(a, os.environ.get("OSC", ""), osrd=72)
    if gp.PROF:
        gp.T(a, 12); a("s_waitcnt vmcnt(0)"); gp.T(a, 13); a("s_cmp_lg_u32 s32, 0\ns_cbranch_scc1 L_k1_end"); gp.Tdump(a, 0, 11)
```

```python
from gen_k1 import *

def loader(a):
    a(f"""
    L_loader:
    s_sub_u32 s33, s32, 4
    v_mov_b32 v9, {BIG}
    v_lshrrev_b32 v2, 2, v0
    v_mul_u32_u24 v2, 288, v2
    v_lshrrev_b32 v3, 4, v0
    v_and_b32 v3, 2, v3
    v_and_b32 v4, 3, v0
    v_xor_b32 v3, v3, v4
    v_lshl_add_u32 v2, v3, 4, v2
    s_lshl_b32 s41, s29, 6
    v_add_u32 v10, s41, v2
    s_cmp_eq_u32 s29, 4
    s_cselect_b32 s41, 1, 100
    v_cmp_lt_u32 vcc, s41, v3
    s_mul_i32 s55, s33, 4608
    s_lshl_b32 s45, s33, 10
    s_mov_b32 s54, {RING}
    v_cndmask_b32 v10, v10, v9, vcc
    """)
    def w1_chunk(tag, tail=False):
        for e in range(3 if tail else 5):
            v = 10
            if (not tail and e == 4) or (tail and e == 2): a(f"s_cmp_ge_u32 s33, 2\ns_cbranch_scc1 L_w1skip_{tag}")
            a(f"s_add_u32 s57, s54, s45\ns_add_u32 m0, s57, {4096*e}\ns_add_u32 s58, s55, {18432*e}")
            if tail and e == 2:
                a(f"s_cmp_eq_u32 s33, 1\ns_cselect_b32 s59, {BIG}, 0\nv_or_b32 v16, s59, v10"); v = 16
            a(f"buffer_load_dwordx4 v{v}, s[12:15], s58 offen lds")
        a(f"L_w1skip_{tag}:\ns_add_u32 s55, s55, 82944"); slot_next(a, 54)
    a("s_mov_b32 s60, 0\nL_ld0:"); w1_chunk("p")
    a("s_add_u32 s60, s60, 1\ns_cmp_lt_u32 s60, 4\ns_cbranch_scc1 L_ld0")
    if os.environ.get("PF"):
        a(f"s_mul_i32 s53, s29, 9216\ns_add_u32 s53, s53, {8*41472}\ns_lshl_b32 s52, s33, 7")
        for e in range(2):
            a(f"""
            s_add_u32 s52, s52, {64*e}
            v_add_u32 v1, s52, v0
            v_mul_u32_u24 v2, 911, v1
            v_lshrrev_b32 v2, 16, v2
            v_mul_u32_u24 v3, 72, v2
            v_sub_u32 v3, v1, v3
            v_lshlrev_b32 v3, 7, v3
            v_mul_u32_u24 v2, 41472, v2
            v_add3_u32 v3, v3, v2, s53
            buffer_load_dword v{30+e}, v3, s[16:19], 0 offen
            """)
    for e in range(5):
        a(f"""
        s_add_u32 s52, s33, {4*e}
        s_cmp_ge_u32 s52, 9
        s_cselect_b32 s53, 9, 0
        s_cselect_b32 s{46+e}, 41472, 0
        s_sub_u32 s52, s52, s53
        s_lshl_b32 s52, s52, 6
        v_add_u32 v1, s52, v0
        v_mul_u32_u24 v2, 3641, v1
        v_lshrrev_b32 v2, 16, v2
        v_mul_u32_u24 v3, 18, v2
        v_sub_u32 v3, v1, v3
        v_and_b32 v4, 4, v2
        v_lshlrev_b32 v4, 1, v4
        v_and_b32 v5, 8, v2
        v_lshrrev_b32 v5, 1, v5
        v_or_b32 v4, v4, v5
        v_and_b32 v5, 0x13, v2
        v_or_b32 v4, v4, v5
        v_mul_u32_u24 v{21+e}, 288, v4
        v_lshl_add_u32 v{21+e}, v3, 4, v{21+e}
        s_cmp_eq_u32 s29, 4
        s_cselect_b32 s53, 15, 100
        v_cmp_lt_u32 vcc, s53, v4
        s_mul_i32 s53, s29, 9216
        v_add_u32 v4, s53, v{21+e}
        v_cndmask_b32 v{11+e}, v4, v9, vcc
        """)
    a("s_mov_b32 s56, 0\ns_cmp_ge_u32 s33, 1\ns_cselect_b32 s61, 9216, 0")
    def w2_chunk(tag, tail=False):
        for e in range(3 if tail else 5):
            if (not tail and e == 4): a(f"s_cmp_ge_u32 s33, 2\ns_cbranch_scc1 L_w2skip_{tag}")
            if (tail and e == 2): a(f"s_cmp_ge_u32 s33, 1\ns_cbranch_scc1 L_w2skip_{tag}")
            a(f"s_add_u32 s57, s54, s45\ns_add_u32 m0, s57, {4096*e}\ns_add_u32 s58, s56, s{46+e}")
            a(f"buffer_load_dwordx4 v{11+e}, s[16:19], s58 offen lds")
        a(f"L_w2skip_{tag}:\ns_add_u32 s56, s56, 82944"); slot_next(a, 54)
    cnt = [4]*7 + [2] + [4]*7 + [2]
    def allowed(n): return sum(cnt[c] for c in range(n+1, min(n+4, 16)))
    a("s_mov_b32 s60, 0\nL_ld1:")
    a(f"s_waitcnt vmcnt({min(allowed(n) for n in range(0,3))})\ns_barrier"); w1_chunk("l1")
    a("s_add_u32 s60, s60, 1\ns_cmp_lt_u32 s60, 3\ns_cbranch_scc1 L_ld1")
    a(f"s_waitcnt vmcnt({allowed(3)})\ns_barrier"); w1_chunk("t", True)
    a("s_mov_b32 s60, 0\nL_ld2:")
    a("s_waitcnt vmcnt(10)\ns_barrier"); w2_chunk("l2")
    a("s_add_u32 s60, s60, 1\ns_cmp_lt_u32 s60, 4\ns_cbranch_scc1 L_ld2")
    a("s_barrier\ns_mov_b32 s60, 0\ns_mov_b32 s54, 0\nL_ld3:"); w2_chunk("l3")
    a("s_add_u32 s60, s60, 1\ns_cmp_lt_u32 s60, 2\ns_cbranch_scc1 L_ld3")
    a("s_waitcnt vmcnt(8)\ns_barrier"); w2_chunk("l4")
    a(f"s_mov_b32 s54, {RING + 2*SLOT}"); w2_chunk("t", True)
    a("s_waitcnt vmcnt(6)\ns_barrier\ns_waitcnt vmcnt(0)\ns_barrier")
    w_dma(a, 64, WF_OFF, "wf")
    w_dma(a, 68, WO_OFF, "wo")
    ge_check_load(a)
    ge_check_wait(a)

def compute(a, store_flags):
    ACC, A1, B1 = 32, 44, 80
    a("s_mov_b32 s33, s32"); x_load(a); flags_reset(a)
    a(f"""
    s_and_b32 s33, s32, 1
    s_lshr_b32 s34, s32, 1
    v_and_b32 v1, 15, v0
    v_lshrrev_b32 v2, 4, v0
    v_lshrrev_b32 v3, 2, v1
    v_lshl_add_u32 v3, v2, 3, v3
    v_lshlrev_b32 v3, 6, v3
    v_and_b32 v4, 1, v2
    v_lshl_add_u32 v3, v4, 5, v3
    v_and_b32 v4, 3, v1
    v_lshl_add_u32 v3, v4, 3, v3
    s_lshl_b32 s35, s33, 5
    v_xor_b32 v4, s35, v3
    s_mul_i32 s35, s34, 48
    v_add_u32 v6, s35, v1
    v_mul_u32_u24 v7, 608, v6
    v_lshl_add_u32 v7, v2, 4, v7
    s_mov_b32 s36, {RING}
    s_mov_b32 s38, 0
    """)
    for i in range(12): a(f"v_mov_b32 v{ACC+i}, 0")
    gp.T(a, 0)
    a("s_waitcnt vmcnt(0)"); reset_count(a)
    def Brd(m, tt): return f"ds_read_b128 {vr(B1+12*m+4*tt)}, v7 offset:{64*m + 9728*tt}"
    def Ard(m, p): return f"ds_read_b64_tr_b16 {vr(A1+4*m+2*p,2)}, v8 offset:{2048*m + 256*p}"
    def mf(m, tt): return f"v_mfma_f32_16x16x32_bf16 {vr(ACC+4*tt)}, {vr(A1+4*m)}, {vr(B1+12*m+4*tt)}, {vr(ACC+4*tt)}"
    def chunk(nk, prefetch):
        q = LQ(a)
        a("v_add_u32 v8, s36, v4")
        if prefetch: a("v_add_u32 v7, 608, v7")
        for m in range(3):
            for p in range(2): a(q.rd(f"A{m}", Ard(m, p)))
        slot_next(a, 36)
        for m in range(nk):
            a(q.wait(f"A{m}"))
            a(mf(m, 0))
            if m + 3 < nk:
                for p in range(2): a(q.rd(f"A{m+3}", Ard(m+3, p)))
            a(mf(m, 1))
            if prefetch: a(q.rd("B", Brd(m, 0)))
            a(mf(m, 2))
            if prefetch: a(q.rd("B", Brd(m, 1))); a(q.rd("B", Brd(m, 2)))
    a("s_barrier")
    if os.environ.get("TW"):
        a(f"""
        s_mul_i32 s39, s30, 1000
        s_mul_i32 s40, s31, 40
        s_add_u32 s39, s39, s40
        s_lshl_b32 s40, s29, 3
        s_add_u32 s39, s39, s40
        s_mul_i32 s39, s39, 2304
        s_mul_i32 s40, s28, 57600
        s_add_u32 s40, s40, {P_WS}
        v_mov_b32 v202, s39
        v_mov_b32 v203, s40
        buffer_load_dword v200, v202, s[72:75], 0 offen
        buffer_load_dword v201, v203, s[20:23], 0 offen sc1
        """)
    for m in range(9):
        for tt in range(3): a(Brd(m, tt))
    a("s_branch L_c1b\nL_c1:\ns_barrier\nL_c1b:")
    if gp.PROF: a("s_cmp_lg_u32 s38, 0\ns_cbranch_scc1 L_not1\ns_memrealtime s[82:83]\nL_not1:")
    chunk(9, True)
    a("s_add_u32 s38, s38, 1\ns_cmp_lt_u32 s38, 7\ns_cbranch_scc1 L_c1")
    gp.T(a, 2)
    a("s_barrier"); chunk(5, False)
    a("s_waitcnt lgkmcnt(0)\ns_barrier")
    ready_bcast(a)
    a(f"""
    v_mul_u32_u24 v14, 80, v6
    v_lshl_add_u32 v14, v2, 3, v14
    s_lshl_b32 s39, s33, 5
    s_add_u32 s39, s39, {H_OFF}
    v_add_u32 v14, s39, v14
    s_mul_i32 s39, s31, 80
    s_sub_u32 s39, s39, 7
    v_add_u32 v15, s39, v6
    s_mov_b32 s40, {GC1}
    s_mov_b32 s41, {GC1}
    v_mov_b32 v16, {GC2}
    v_mov_b32 v17, {GC2}
    s_movk_i32 s42, 2000
    """)
    a144_addr(a, 4, 0, 10, 11)
    gelu_pk(a, [ACC+i for i in range(12)], 64, (40, 16))
    for tt in range(3):
        a(f"v_add_u32 v18, {16*tt}, v15\nv_cmp_gt_u32 vcc, s42, v18")
        a(f"v_cvt_pk_bf16_f32 v64, v{ACC+4*tt}, v{ACC+4*tt+1}\nv_cvt_pk_bf16_f32 v65, v{ACC+4*tt+2}, v{ACC+4*tt+3}")
        a(f"v_cndmask_b32 v{66+2*tt}, 0, v64, vcc\nv_cndmask_b32 v{67+2*tt}, 0, v65, vcc")
        a(f"ds_write_b64 v14, {vr(66+2*tt,2)} offset:{1280*tt}")
    ACC2, A2, B2 = 32, 64, 92
    a(f"""
    s_lshl_b32 s39, s32, 6
    v_add_u32 v5, 256, v4
    v_add_u32 v4, s39, v4
    v_mul_u32_u24 v6, 160, v1
    v_lshl_add_u32 v6, v2, 4, v6
    v_add_u32 v6, {H_OFF}, v6
    s_min_u32 s39, s32, 2
    s_mul_i32 s39, s39, 2560
    v_add_u32 v7, s39, v6
    s_mov_b32 s38, 0
    """)
    a("s_waitcnt lgkmcnt(0)")
    gp.T(a, 4)
    a(f"""
    v_add_u32 v8, {RING}, v4
    v_add_u32 v9, {RING}, v5
    v_add_u32 v12, {RING + 3*SLOT}, v4
    v_add_u32 v13, {RING + 3*SLOT}, v5
    """)
    CH = [(12, 13, 0), (12, 13, SLOT), (8, 9, 0), (8, 9, SLOT), (4, 5, 0), (4, 5, SLOT), (4, 5, 2*SLOT), (8, 9, 2*SLOT)]
    def A2rd(tap, i):
        A = A2 + 12*(tap & 1); va, vt, off = CH[tap >> 1]; off += 9216*(tap & 1)
        if i < 4: return f"ds_read_b64_tr_b16 {vr(A+4*(i//2)+2*(i%2),2)}, v{va} offset:{off+32*(i//2)+2304*(i%2)}"
        return f"ds_read_b64_tr_b16 {vr(A+8+2*(i-4),2)}, v{vt} offset:{off+2304*(i-4)}"
    def B2rd(tap, i):
        B = B2 + 16*(tap & 1)
        if i < 3: return f"ds_read_b128 {vr(B+4*i)}, v6 offset:{2560*i+80*tap}"
        return f"ds_read_b128 {vr(B+12)}, v7 offset:{80*tap}"
    def mf2(tap):
        A = A2 + 12*(tap & 1); B = B2 + 16*(tap & 1); l = []
        for d in range(2):
            for tt in range(3):
                c = ACC2 + 4*(3*d+tt); l.append(f"v_mfma_f32_16x16x32_bf16 {vr(c)}, {vr(A+4*d)}, {vr(B+4*tt)}, {vr(c) if tap else 0}")
        c = ACC2 + 24; l.append(f"v_mfma_f32_16x16x32_bf16 {vr(c)}, {vr(A+8)}, {vr(B+12)}, {vr(c) if tap else 0}")
        return l
    q = LQ(a)
    a("s_barrier")
    for tap in range(2):
        for i in range(6): a(q.rd(f"t{tap}", A2rd(tap, i)))
        for i in range(4): a(q.rd(f"t{tap}", B2rd(tap, i)))
    for tap in range(15):
        if tap in (6, 8): a("s_barrier")
        if tap == 13: ready_load(a)
        a(q.wait(f"t{tap}"))
        m = mf2(tap); n = tap + 2
        pre = {2: [("A", 0), ("A", 1)], 3: [("B", 0)], 4: [("B", 1)], 5: [("B", 2), ("A", 2), ("A", 3)], 6: [("A", 4), ("A", 5), ("B", 3)]}
        for k in range(7):
            a(m[k])
            if n < 15:
                for w, i in pre.get(k, []): a(q.rd(f"t{n}", A2rd(n, i) if w == "A" else B2rd(n, i)))
    gp.T(a, 6)
    a(f"""
    v_lshrrev_b32 v3, 3, v1
    v_mul_u32_u24 v3, 11520, v3
    v_lshl_add_u32 v3, v2, 6, v3
    v_and_b32 v4, 7, v1
    v_lshl_add_u32 v3, v4, 3, v3
    s_mul_i32 s39, s28, 57600
    s_mul_i32 s40, s29, 2304
    s_add_u32 s39, s39, s40
    s_add_u32 s39, s39, {P_WS}
    v_add_u32 v3, s39, v3
    s_lshl_b32 s40, s32, 9
    v_add_u32 v4, s40, v3
    v_mov_b32 v9, {BIG}
    v_cmp_gt_u32 vcc, 8, v1
    s_min_u32 s41, s32, 2
    s_mul_i32 s41, s41, 23040
    v_cndmask_b32 v5, v9, v4, vcc
    s_add_u32 s41, s41, 2048
    v_add_u32 v6, s41, v3
    v_cndmask_b32 v7, v9, v6, vcc
    s_cmp_eq_u32 s32, 2
    s_cselect_b64 vcc, -1, 0
    v_cndmask_b32 v6, v6, v7, vcc
    s_cmp_eq_u32 s32, 3
    s_cselect_b64 vcc, -1, 0
    v_cndmask_b32 v6, v6, v9, vcc
    s_movk_i32 s42, 23040
    s_mov_b32 s43, 46080
    """)
    for t in range(7):
        c = ACC2 + 4*t
        a(f"v_cvt_pk_bf16_f32 v{64+2*t}, v{c}, v{c+1}\nv_cvt_pk_bf16_f32 v{65+2*t}, v{c+2}, v{c+3}")
    for d in range(2):
        for tt in range(3):
            t = 3*d + tt
            va, so = [(4, "0"), (4, "s42"), (5, "s43")][tt]
            a(f"buffer_store_dwordx2 {vr(64+2*t,2)}, v{va}, s[20:23], {so} offen offset:{256*d}{store_flags}")
    a(f"buffer_store_dwordx2 {vr(76,2)}, v6, s[20:23], 0 offen{store_flags}")
```
